```python
import torch

def _softmax(x, axis=-1):
    return torch.softmax(x, dim=axis)
def _gelu(x):
    return torch.nn.functional.gelu(x, approximate="tanh")
def _silu(x):
    return torch.nn.functional.silu(x)
def _sigmoid(x):
    return torch.sigmoid(x)
def _layernorm(x, axis=-1, eps=1e-5):
    m = x.mean(dim=axis, keepdim=True)
    v = x.var(dim=axis, keepdim=True, unbiased=False)
    return (x - m) / torch.sqrt(v + eps)
def _scatter_add(tgt, idx, src, axis=0):
    return tgt.clone().index_add_(axis, idx, src)
def _segment_sum(src, seg, n):
    out = torch.zeros((n,) + src.shape[1:], dtype=src.dtype)
    return out.index_add_(0, seg, src)
def _pad(x, pw):
    flat = tuple(v for pair in reversed(pw) for v in pair)
    return torch.nn.functional.pad(x, flat)

kernel_name = 'gated_mix__ssm_conv_s5__glu_gated_geglu__prompt'

def setup_inputs():

    _w = (lambda a: (lambda t: t.to(torch.bfloat16) if t.is_floating_point() else t)(torch.as_tensor(a)))
    def _A_setup():
        B, S, D = 1, 2048, 512
        P = D
        Lambda_re = -0.5 * (lambda _x: torch.exp(torch.as_tensor(_x)))((lambda *s: torch.randn(*s, dtype=torch.bfloat16) * 0.2)(P))
        Lambda_im = (lambda *s: torch.randn(*s, dtype=torch.bfloat16) * 0.4)(P) * 1.0
        B_re = (lambda *s: torch.randn(*s, dtype=torch.bfloat16) * 0.2)(P, D) * (D ** -0.5)
        B_im = (lambda *s: torch.randn(*s, dtype=torch.bfloat16) * 0.2)(P, D) * (D ** -0.5)
        C_re = (lambda *s: torch.randn(*s, dtype=torch.bfloat16) * 0.2)(D, P) * (P ** -0.5)
        C_im = (lambda *s: torch.randn(*s, dtype=torch.bfloat16) * 0.2)(D, P) * (P ** -0.5)
        log_dt = (lambda *s: torch.randn(*s, dtype=torch.bfloat16) * 0.2)(P) * 0.3 - 2.0
        Dskip = (lambda *s: torch.randn(*s, dtype=torch.bfloat16) * 0.05)(D)
        return {
            "x": _w((lambda *s: torch.randn(*s, dtype=torch.bfloat16) * 0.05)(B, S, D)),
            "Lambda_re": _w(Lambda_re),
            "Lambda_im": _w(Lambda_im),
            "B_re": _w(B_re),
            "B_im": _w(B_im),
            "C_re": _w(C_re),
            "C_im": _w(C_im),
            "log_dt": _w(log_dt),
            "Dskip": _w(Dskip),
        }
    _A_in = _A_setup()

    def _B_setup():
        B, S, Dm, Df = 1, 2048, 512, 1792
        return {
            "x": _w((lambda *s: torch.randn(*s, dtype=torch.bfloat16) * 0.05)(B, S, Dm)),
            "w_gate": _w((lambda *s: torch.randn(*s, dtype=torch.bfloat16) * 1.6)(Dm, Df) * (Dm ** -0.5)),
            "w_up": _w((lambda *s: torch.randn(*s, dtype=torch.bfloat16) * 1.6)(Dm, Df) * (Dm ** -0.5)),
            "w_down": _w((lambda *s: torch.randn(*s, dtype=torch.bfloat16) * 1.6)(Df, Dm) * (Df ** -0.5)),
        }
    _B_in = _B_setup()

    return {
        "A_x": _A_in["x"],
        "A_Lambda_re": _A_in["Lambda_re"],
        "A_Lambda_im": _A_in["Lambda_im"],
        "A_B_re": _A_in["B_re"],
        "A_B_im": _A_in["B_im"],
        "A_C_re": _A_in["C_re"],
        "A_C_im": _A_in["C_im"],
        "A_log_dt": _A_in["log_dt"],
        "A_Dskip": _A_in["Dskip"],
        "B_x": _B_in["x"],
        "B_w_gate": _B_in["w_gate"],
        "B_w_up": _B_in["w_up"],
        "B_w_down": _B_in["w_down"],
        "gate_w": _w((lambda *s: torch.randn(*s, dtype=torch.bfloat16) * 0.05)(512) * 16.0),
    }

def reference(A_x, A_Lambda_re, A_Lambda_im, A_B_re, A_B_im, A_C_re, A_C_im, A_log_dt, A_Dskip, B_x, B_w_gate, B_w_up, B_w_down, gate_w):
    def _A_ref(x, Lambda_re, Lambda_im, B_re, B_im, C_re, C_im, log_dt, Dskip):
        Bsz, L, H = x.shape
        Lam = Lambda_re + 1j * Lambda_im
        Bmat = B_re + 1j * B_im
        Cmat = C_re + 1j * C_im
        dt = torch.exp(log_dt)
        Lam_bar = torch.exp(dt * Lam)
        B_bar = ((Lam_bar - 1.0) / Lam)[:, None] * Bmat
        Bu = torch.einsum("bld,pd->blp", x + 0j, B_bar)
        h = torch.zeros_like(Bu[:, 0, :])
        hs = []
        for t in range(L):
            h = Lam_bar[None, :] * h + Bu[:, t, :]
            hs.append(h)
        hseq = torch.stack(hs, 1)
        y = 2.0 * torch.einsum("blp,dp->bld", hseq, Cmat).real + x * Dskip[None, None, :]
        return y

    def _B_ref(x, w_gate, w_up, w_down):
        g = torch.einsum("bsd,df->bsf", x, w_gate)
        u = torch.einsum("bsd,df->bsf", x, w_up)
        h = _gelu(g) * u
        return torch.einsum("bsf,fd->bsd", h, w_down)

    x = A_x
    g = _sigmoid((x * gate_w).sum(-1, keepdims=True))
    a = _A_ref(x, A_Lambda_re, A_Lambda_im, A_B_re, A_B_im, A_C_re, A_C_im, A_log_dt, A_Dskip)
    b = _B_ref(x, B_w_gate, B_w_up, B_w_down)
    return g * a + (1 - g) * b
```

```python
class Asm:
    def __init__(self):
        self.lines = []
    def __call__(self, s=""):
        for l in s.split("\n"):
            self.lines.append(l)
    def e(self, s):
        self.lines.append("    " + s)
    def label(self, s):
        self.lines.append(s + ":")
    def c(self, s):
        self.lines.append("    ; " + s)
    def text(self):
        return "\n".join(self.lines) + "\n"

def vr(a, n=1):
    return f"v{a}" if n == 1 else f"v[{a}:{a+n-1}]"
def ar(a, n=1):
    return f"a{a}" if n == 1 else f"a[{a}:{a+n-1}]"
def sr(a, n=1):
    return f"s{a}" if n == 1 else f"s[{a}:{a+n-1}]"

def reg(r, n=1):
    if isinstance(r, tuple):
        k, i = r
        return vr(i, n) if k == 'v' else ar(i, n)
    if r >= 256:
        return ar(r - 256, n)
    return vr(r, n)

def kernel_desc(name, vgpr, sgpr, accum):
    return f""".section .rodata,"a"
.p2align 6
.amdhsa_kernel {name}
  .amdhsa_next_free_vgpr {vgpr}
  .amdhsa_next_free_sgpr {sgpr}
  .amdhsa_accum_offset {accum}
  .amdhsa_group_segment_fixed_size 0
  .amdhsa_kernarg_size 136
  .amdhsa_user_sgpr_count 2
  .amdhsa_user_sgpr_kernarg_segment_ptr 1
  .amdhsa_system_sgpr_workgroup_id_x 1
.end_amdhsa_kernel
"""

def kernel_head(name):
    return f""".text
.globl {name}
.p2align 8
.type {name},@function
{name}:
"""
```

```python
from asmlib import *
from collections import deque
import math, struct

HF_OFF = 0
WF_OFF = 0x00C00000
G_OFF  = 0x00F00000
S_OFF  = 0x00F10000
DIAG_OFF = 0x02000000
WS_RECORDS = 0x04000000
NSTEP = 176

def f2u(x): return struct.unpack("<I", struct.pack("<f", x))[0]
def hx(x): return "0x%08x" % f2u(x)

class Gen(Asm):
    def __init__(self):
        super().__init__()
        self.vmn = 0; self.vmd = 0; self.lgn = 0; self.lgd = 0
    def vm(self, t): self.e(t); self.vmn += 1; return self.vmn
    def lg(self, t): self.e(t); self.lgn += 1; return self.lgn
    def wvm(self, tok):
        if tok > self.vmd:
            n = min(self.vmn - tok, 63); self.e(f"s_waitcnt vmcnt({n})"); self.vmd = self.vmn - n
    def wlg(self, tok):
        if tok > self.lgd:
            n = min(self.lgn - tok, 15); self.e(f"s_waitcnt lgkmcnt({n})"); self.lgd = self.lgn - n
    def vm_reset(self): self.vmd = self.vmn
    def lg_reset(self): self.lgd = self.lgn

S_X, S_BRE, S_BIM, S_WG, S_WU, S_WS, S_DBG = 4, 8, 12, 16, 20, 24, 28
S_LRE, S_LIM, S_CRE, S_CIM, S_LDT = 32, 34, 36, 38, 40
S_WD, S_GW = 44, 46
S_R, S_J, S_W, S_CW, S_TW = 48, 49, 50, 51, 52
S_XB, S_BB, S_WA, S_WBC, S_WDo = 53, 54, 55, 56, 57
S_LX, S_LB = 58, 59
S_T0, S_T1, S_T2, S_T3 = 60, 61, 62, 63
S_SEGM = 64
S_FM = 80
S_H0, S_H1, S_HD, S_HS = 84, 85, 86, 87
S_ST = 88
S_OOB = 100
S_DMA = 98
S_SPIN = 99

V_LANE = 1
V_VX = 2
V_VB = 6
V_WGA, V_WUA = 7, 8
V_WG = 9
V_WU = 13
V_XA0, V_XA1, V_BA = 17, 21, 25
V_WA, V_WB, V_WD0, V_WD1 = 29, 30, 31, 32
V_LR, V_LI, V_CR, V_CI, V_L16R, V_L16I, V_L128R, V_L128I, V_AR, V_AI, V_PR, V_PI = range(33, 45)
V_EW, V_ER, V_L16B, V_C1, V_TBW, V_TBR, V_SOFF, V_GOFF = range(45, 53)
V_H, V_N = 53, 54
V_SJ = 56
SRE, SIM, P0, P1, Q0, Q1 = 64, 80, 96, 112, 128, 144
FBR, FBI, FW = 160, 168, 176
V_SJ2 = 192
V_OUT = 200
VT = 208

LDS_E = 131072
LDS_TB = 131072 + 2048
LDS_TOTAL = 131072 + 2048 + 16384

def xreg(tt, s): return f"a[{(tt*32+s)*4}:{(tt*32+s)*4+3}]"
def v4(r): return f"v[{r}:{r+3}]"
def v16(r): return f"v[{r}:{r+15}]"

def gen_k1(name, diag=False, code_bytes=16384, codelabel=None):
    g = Gen(); e = g.e
    g(kernel_head(name))
    e("s_cmp_ge_u32 s2, 256"); e(f"s_cbranch_scc1 {name}_end")
    if diag:
        e(f"s_memrealtime s[{S_ST}:{S_ST+1}]"); e(f"s_memtime s[{S_ST+2}:{S_ST+3}]")
    e(f"s_load_dwordx2 s[{S_X}:{S_X+1}], s[0:1], 0")
    e(f"s_load_dwordx2 s[{S_BRE}:{S_BRE+1}], s[0:1], 24")
    e(f"s_load_dwordx2 s[{S_BIM}:{S_BIM+1}], s[0:1], 32")
    e(f"s_load_dwordx2 s[{S_WG}:{S_WG+1}], s[0:1], 80")
    e(f"s_load_dwordx2 s[{S_WU}:{S_WU+1}], s[0:1], 88")
    e(f"s_load_dwordx4 s[{S_LRE}:{S_LRE+3}], s[0:1], 8")
    e(f"s_load_dwordx4 s[{S_CRE}:{S_CRE+3}], s[0:1], 40")
    e(f"s_load_dwordx2 s[{S_LDT}:{S_LDT+1}], s[0:1], 56")
    e(f"s_load_dwordx4 s[{S_WD}:{S_WD+3}], s[0:1], 96")
    e(f"s_load_dwordx2 s[{S_DBG}:{S_DBG+1}], s[0:1], 120")
    e(f"s_load_dwordx2 s[{S_WS}:{S_WS+1}], s[0:1], 128")
    e(f"s_getpc_b64 s[{S_T0}:{S_T0+1}]")
    e(f"v_lshlrev_b32 v{VT}, 4, v0")
    for i in range((code_bytes + 4095)//4096):
        g.vm(f"global_load_dwordx4 v[{VT+4}:{VT+7}], v{VT}, s[{S_T0}:{S_T0+1}]")
        e(f"v_add_u32 v{VT}, 0x1000, v{VT}")
    e(f"v_and_b32 v{V_LANE}, 63, v0")
    e(f"v_lshrrev_b32 v{VT+1}, 6, v0")
    e(f"s_and_b32 s{S_T2}, s2, 7")
    e(f"v_readfirstlane_b32 s{S_W}, v{VT+1}")
    e(f"s_lshr_b32 s{S_T3}, s2, 3")
    e(f"s_lshr_b32 s{S_R}, s{S_T2}, 1"); e(f"s_lshl_b32 s{S_R}, s{S_R}, 2")
    e(f"s_and_b32 s{S_J}, s{S_T3}, 3"); e(f"s_add_u32 s{S_R}, s{S_R}, s{S_J}")
    e(f"s_and_b32 s{S_J}, s{S_T2}, 1"); e(f"s_lshl_b32 s{S_J}, s{S_J}, 3")
    e(f"s_lshr_b32 s{S_T3}, s{S_T3}, 2"); e(f"s_add_u32 s{S_J}, s{S_J}, s{S_T3}")
    e(f"s_and_b32 s{S_CW}, s{S_W}, 1"); e(f"s_lshr_b32 s{S_TW}, s{S_W}, 1")
    L = V_LANE
    t0, t1, t2, t3 = VT+8, VT+9, VT+10, VT+11
    e(f"v_lshrrev_b32 v{V_H}, 5, v{L}"); e(f"v_and_b32 v{V_N}, 31, v{L}")
    e(f"v_lshlrev_b32 v{V_L16B}, 4, v{L}")
    e(f"v_bfe_u32 v{t0}, v{L}, 3, 2"); e(f"v_lshl_add_u32 v{t0}, v{V_H}, 4, v{t0}"); e(f"v_lshlrev_b32 v{t0}, 10, v{t0}")
    e(f"v_lshrrev_b32 v{t1}, 4, v{L}"); e(f"v_and_b32 v{t2}, 7, v{L}")
    e(f"v_xor_b32 v{t3}, v{t2}, v{t1}")
    for i in range(4):
        e(f"v_xor_b32 v{V_VX+i}, {4*(i&1)}, v{t3}")
        e(f"v_lshl_add_u32 v{V_VX+i}, v{V_VX+i}, 4, v{t0}")
        if i: e(f"v_add_u32 v{V_VX+i}, {i*3072}, v{V_VX+i}")
    e(f"s_lshl_b32 s{S_T2}, s{S_CW}, 2")
    e(f"v_xor_b32 v{V_VB}, s{S_T2}, v{t3}")
    e(f"v_lshrrev_b32 v{t0}, 3, v{L}"); e(f"v_lshlrev_b32 v{t0}, 10, v{t0}")
    e(f"v_lshl_add_u32 v{V_VB}, v{V_VB}, 4, v{t0}")
    e(f"v_lshrrev_b32 v{t0}, 2, v{L}"); e(f"v_mul_u32_u24 v{t0}, 3584, v{t0}")
    e(f"v_and_b32 v{t1}, 3, v{L}"); e(f"v_lshl_add_u32 v{V_WGA}, v{t1}, 4, v{t0}")
    e(f"v_xor_b32 v{t1}, 2, v{t1}"); e(f"v_lshl_add_u32 v{V_WUA}, v{t1}, 4, v{t0}")
    e(f"s_lshl_b32 s{S_XB}, s{S_R}, 17"); e(f"s_lshl_b32 s{S_T2}, s{S_W}, 15"); e(f"s_add_u32 s{S_XB}, s{S_XB}, s{S_T2}")
    e(f"s_lshl_b32 s{S_BB}, s{S_J}, 15"); e(f"s_lshl_b32 s{S_T2}, s{S_W}, 13"); e(f"s_add_u32 s{S_BB}, s{S_BB}, s{S_T2}")
    e(f"s_mul_i32 s{S_T2}, s{S_J}, 224"); e(f"s_and_b32 s{S_T3}, s{S_J}, 1"); e(f"s_lshl_b32 s{S_T3}, s{S_T3}, 5")
    e(f"s_add_u32 s{S_T3}, s{S_T2}, s{S_T3}")
    e(f"s_mul_i32 s{S_WA}, s{S_W}, {16*3584}"); e(f"s_add_u32 s{S_WA}, s{S_WA}, s{S_T3}")
    e(f"s_mul_i32 s{S_WBC}, s{S_W}, {64*3584}"); e(f"s_add_u32 s{S_WBC}, s{S_WBC}, s{S_T3}")
    e(f"s_and_b32 s{S_T3}, s{S_J}, 1"); e(f"s_cmp_eq_u32 s{S_T3}, 0"); e(f"s_cselect_b32 s{S_T3}, 192, 0")
    e(f"s_add_u32 s{S_T3}, s{S_T3}, s{S_T2}")
    e(f"s_mul_i32 s{S_WDo}, s{S_W}, {128*3584}"); e(f"s_add_u32 s{S_WDo}, s{S_WDo}, s{S_T3}")
    e(f"s_lshl_b32 s{S_LX}, s{S_W}, 12"); e(f"s_add_u32 s{S_LB}, s{S_LX}, 16384")
    e("s_waitcnt lgkmcnt(0)")
    def srd(s, nbytes, down=0):
        if down:
            e(f"s_sub_u32 s{s}, s{s}, {down}"); e(f"s_subb_u32 s{s+1}, s{s+1}, 0")
        e(f"s_mov_b32 s{s+2}, {nbytes+down}"); e(f"s_mov_b32 s{s+3}, 0x20000")
    srd(S_X, 2048*512*2); srd(S_BRE, 512*512*2); srd(S_BIM, 512*512*2, 1024)
    srd(S_WG, 512*1792*2, 2048); srd(S_WU, 512*1792*2, 3072)
    srd(S_WS, WS_RECORDS); srd(S_DBG, 256)
    chunk_tok = {}
    def dma_chunk(c):
        slot = (c % 4)*32768
        items = []
        def it(f): items.append(f)
        if c < 8:
            def x0():
                e(f"s_add_u32 m0, s{S_LX}, {slot}"); e(f"s_add_u32 s{S_DMA}, s{S_XB}, {c*128}")
                g.vm(f"buffer_load_dwordx4 v{V_VX}, s[{S_X}:{S_X+3}], s{S_DMA} offen lds")
            it(x0)
            for i in range(1,4):
                it(lambda i=i: g.vm(f"buffer_load_dwordx4 v{V_VX+i}, s[{S_X}:{S_X+3}], s{S_DMA} offen offset:{i*1024} lds"))
            def b0():
                e(f"s_add_u32 m0, s{S_LB}, {slot}"); e(f"s_add_u32 s{S_DMA}, s{S_BB}, {c*128}")
                g.vm(f"buffer_load_dwordx4 v{V_VB}, s[{S_BRE}:{S_BRE+3}], s{S_DMA} offen lds")
            it(b0)
            it(lambda: g.vm(f"buffer_load_dwordx4 v{V_VB}, s[{S_BIM}:{S_BIM+3}], s{S_DMA} offen offset:1024 lds"))
            def w0():
                e(f"s_add_u32 s{S_DMA}, s{S_WA}, {c*64*3584}")
                g.vm(f"buffer_load_dwordx4 v{V_WGA}, s[{S_WG}:{S_WG+3}], s{S_DMA} offen offset:2048 lds")
            it(w0)
            def w1():
                chunk_tok[c] = g.vm(f"buffer_load_dwordx4 v{V_WUA}, s[{S_WU}:{S_WU+3}], s{S_DMA} offen offset:3072 lds")
            it(w1)
        else:
            if c < 12:
                q = 1 + (c-8)//2; hk = (c-8) % 2
                base, const = S_WBC, q*64 + hk*256*3584
            else:
                base, const = S_WDo, 0
            def g0():
                if c == 12:
                    tA, tB = VT+12, VT+13
                    e(f"v_lshrrev_b32 v{tA}, 1, v{V_LANE}"); e(f"v_and_b32 v{tB}, 1, v{V_LANE}"); e(f"v_lshlrev_b32 v{tB}, 4, v{tB}")
                    e(f"v_mul_u32_u24 v{V_WG}, 3584, v{tA}"); e(f"v_xor_b32 v{tA}, 4, v{tA}"); e(f"v_mul_u32_u24 v{V_WU}, 3584, v{tA}")
                    e(f"v_add_u32 v{V_WG}, v{V_WG}, v{tB}"); e(f"v_add_u32 v{V_WU}, v{V_WU}, v{tB}")
                    for i in range(1,4):
                        e(f"v_add_u32 v{V_WG+i}, {i*(32*3584-1024)}, v{V_WG}"); e(f"v_add_u32 v{V_WU+i}, {i*(32*3584-1024)}, v{V_WU}")
                e(f"s_add_u32 m0, s{S_LX}, {slot}"); e(f"s_add_u32 s{S_DMA}, s{base}, {const+2048}")
                g.vm(f"buffer_load_dwordx4 v{V_WG}, s[{S_WG}:{S_WG+3}], s{S_DMA} offen lds")
            it(g0)
            for i in range(1,4):
                it(lambda i=i: g.vm(f"buffer_load_dwordx4 v{V_WG+i}, s[{S_WG}:{S_WG+3}], s{S_DMA} offen offset:{i*1024} lds"))
            def u0():
                e(f"s_add_u32 m0, s{S_LB}, {slot}"); e(f"s_add_u32 s{S_DMA}, s{base}, {const+3072}")
                g.vm(f"buffer_load_dwordx4 v{V_WU}, s[{S_WU}:{S_WU+3}], s{S_DMA} offen lds")
            it(u0)
            def ul(i):
                tok = g.vm(f"buffer_load_dwordx4 v{V_WU+i}, s[{S_WU}:{S_WU+3}], s{S_DMA} offen offset:{i*1024} lds")
                if i == 3: chunk_tok[c] = tok
            for i in range(1,4): it(lambda i=i: ul(i))
        return items
    for c in range(3):
        for f in dma_chunk(c): f()
    e(f"s_lshl_b32 s{S_T2}, s{S_J}, 6"); e(f"v_lshl_add_u32 v{t0}, v{V_N}, 1, s{S_T2}")
    PL, PI_, PD = 128, 129, 130
    tk_par = [g.vm(f"global_load_ushort v{PL}, v{t0}, s[{S_LRE}:{S_LRE+1}]"),
              g.vm(f"global_load_ushort v{PI_}, v{t0}, s[{S_LIM}:{S_LIM+1}]"),
              g.vm(f"global_load_ushort v{PD}, v{t0}, s[{S_LDT}:{S_LDT+1}]")]
    GX0, GX1, GW = 132, 136, 140
    e(f"s_lshl_b32 s{S_T2}, s{S_R}, 7"); e(f"s_lshl_b32 s{S_T3}, s{S_J}, 3"); e(f"s_add_u32 s{S_T2}, s{S_T2}, s{S_T3}")
    e(f"s_lshl_b32 s{S_T3}, s{S_W}, 1"); e(f"s_add_u32 s{S_T2}, s{S_T2}, s{S_T3}")
    e(f"s_lshl_b32 s{S_T3}, s{S_T2}, 2"); e(f"s_add_u32 s{S_T3}, s{S_T3}, {G_OFF}"); e(f"v_mov_b32 v{V_GOFF}, s{S_T3}")
    e(f"s_lshl_b32 s{S_T2}, s{S_T2}, 10"); e(f"v_add_u32 v{t0}, s{S_T2}, v{V_L16B}")
    g.vm(f"global_load_dwordx4 {v4(GX0)}, v{t0}, s[{S_X}:{S_X+1}]")
    g.vm(f"global_load_dwordx4 {v4(GX1)}, v{t0}, s[{S_X}:{S_X+1}] offset:1024")
    tk_gate = g.vm(f"global_load_dwordx4 {v4(GW)}, v{V_L16B}, s[{S_GW}:{S_GW+1}]")
    e(f"s_lshl_b32 s{S_T2}, s{S_R}, 15"); e(f"s_lshl_b32 s{S_T3}, s{S_J}, 6"); e(f"s_add_u32 s{S_T2}, s{S_T2}, s{S_T3}")
    e(f"s_lshl_b32 s{S_T3}, s{S_W}, 4"); e(f"s_add_u32 s{S_T2}, s{S_T2}, s{S_T3}")
    e(f"v_lshlrev_b32 v{t0}, 10, v{V_N}"); e(f"v_lshl_add_u32 v{t0}, v{V_H}, 3, v{t0}"); e(f"v_add_u32 v{t0}, s{S_T2}, v{t0}")
    g.vm(f"global_load_dwordx2 v[{V_SJ}:{V_SJ+1}], v{t0}, s[{S_CRE}:{S_CRE+1}]")
    tk_c = g.vm(f"global_load_dwordx2 v[{V_SJ+2}:{V_SJ+3}], v{t0}, s[{S_CIM}:{S_CIM+1}]")
    e(f"s_mul_i32 s{S_T2}, s{S_J}, 7"); e(f"s_add_u32 s{S_T2}, s{S_T2}, s{S_W}"); e(f"s_lshl_b32 s{S_T2}, s{S_T2}, 14")
    e(f"s_lshl_b32 s{S_T3}, s{S_R}, 6"); e(f"s_add_u32 s{S_T2}, s{S_T2}, s{S_T3}")
    e(f"v_lshlrev_b32 v{t0}, 12, v{V_H}"); e(f"v_lshl_add_u32 v{t0}, v{V_N}, 1, v{t0}"); e(f"v_add_u32 v{t0}, s{S_T2}, v{t0}")
    e(f"s_add_u32 s{S_T3}, s{S_W}, 4"); e(f"s_min_u32 s{S_T3}, s{S_T3}, 6"); e(f"s_sub_u32 s{S_T3}, s{S_T3}, s{S_W}"); e(f"s_lshl_b32 s{S_T3}, s{S_T3}, 14")
    e(f"v_add_u32 v{t1}, 0x2000, v{t0}"); e(f"v_add_u32 v{t2}, s{S_T3}, v{t0}"); e(f"v_add_u32 v{t3}, s{S_T3}, v{t1}")
    for fr, (ra, rb_) in enumerate(((t0, t1), (t2, t3))):
        for i in range(8):
            op = "global_load_short_d16_hi" if (i & 1) else "global_load_ushort"
            dst = (FW+8 if (i & 1) else V_SJ2) + 4*fr + (i>>1)
            if i & 1: e(f"v_mov_b32 v{dst}, 0")
            tk_wd = g.vm(f"{op} v{dst}, v{ra if i < 4 else rb_}, s[{S_WD}:{S_WD+1}] offset:{(i&3)*1024}")
    e(f"v_bfe_u32 v{t0}, v{V_N}, 1, 3"); e(f"v_xor_b32 v{t0}, v{t0}, v{V_H}"); e(f"v_lshlrev_b32 v{t0}, 4, v{t0}")
    e(f"v_lshl_add_u32 v{t0}, v{V_N}, 7, v{t0}")
    e(f"s_lshl_b32 s{S_T2}, s{S_W}, 12")
    e(f"s_xor_b32 s{S_T3}, s{S_W}, 1"); e(f"s_lshl_b32 s{S_T3}, s{S_T3}, 12")
    for s_ in range(4):
        e(f"v_xor_b32 v{t1}, {32*s_}, v{t0}")
        e(f"v_add_u32 v{V_XA0+s_}, s{S_T2}, v{t1}"); e(f"v_add_u32 v{V_XA1+s_}, s{S_T3}, v{t1}")
        e(f"v_lshrrev_b32 v{t2}, 3, v{V_N}"); e(f"v_mul_u32_u24 v{t2}, 3072, v{t2}"); e(f"v_add_u32 v{t2}, 0x4000, v{t2}")
        e(f"v_add_u32 v{V_BA+s_}, v{t1}, v{t2}")
    up, lam = VT+28, VT+29
    e(f"v_bfe_u32 v{up}, v{L}, 4, 1"); e(f"v_and_b32 v{lam}, 15, v{L}")
    e(f"v_lshrrev_b32 v{t0}, 2, v{lam}"); e(f"v_lshl_add_u32 v{t0}, v{V_H}, 3, v{t0}")
    e(f"v_and_b32 v{t1}, 3, v{lam}"); e(f"v_lshlrev_b32 v{t1}, 3, v{t1}")
    e(f"v_xor_b32 v{t2}, s{S_CW}, v{up}"); e(f"v_lshl_add_u32 v{t1}, v{t2}, 5, v{t1}")
    e(f"v_lshl_add_u32 v{t2}, v{t0}, 6, v{t1}")
    e(f"v_lshlrev_b32 v{t3}, 10, v{up}"); e(f"v_add_u32 v{V_WA}, v{t2}, v{t3}"); e(f"v_add_u32 v{V_WA}, 0x4800, v{V_WA}")
    e(f"v_lshlrev_b32 v{t3}, 14, v{up}"); e(f"v_add_u32 v{V_WB}, v{t2}, v{t3}")
    e(f"v_and_b32 v{t1}, 3, v{lam}"); e(f"v_lshlrev_b32 v{t1}, 3, v{t1}"); e(f"v_lshl_add_u32 v{t1}, v{t0}, 5, v{t1}")
    e(f"v_lshl_add_u32 v{t1}, v{up}, 14, v{t1}")
    e(f"v_lshl_add_u32 v{V_WD0}, v{up}, 7, v{t1}")
    e(f"v_xor_b32 v{t2}, 1, v{up}"); e(f"v_lshl_add_u32 v{V_WD1}, v{t2}, 7, v{t1}")
    for i in range(4):
        e(f"v_add_u32 v{V_WG+i}, {i*(57344-1024)}, v{V_WGA}"); e(f"v_add_u32 v{V_WU+i}, {i*(57344-1024)}, v{V_WUA}")
    e(f"s_lshl_b32 s{S_T2}, s{S_W}, 9"); e(f"s_add_u32 s{S_T2}, s{S_T2}, {LDS_E}")
    e(f"v_lshlrev_b32 v{t0}, 3, v{V_N}"); e(f"v_lshl_add_u32 v{V_EW}, v{V_H}, 8, v{t0}"); e(f"v_add_u32 v{V_EW}, s{S_T2}, v{V_EW}")
    e(f"v_add_u32 v{V_ER}, {LDS_E}, v{t0}")
    e(f"s_lshl_b32 s{S_T2}, s{S_W}, 12"); e(f"s_add_u32 s{S_T2}, s{S_T2}, {LDS_TB}")
    e(f"v_lshlrev_b32 v{t0}, 2, v{V_N}"); e(f"v_lshl_add_u32 v{V_TBW}, v{V_H}, 11, v{t0}"); e(f"v_add_u32 v{V_TBW}, s{S_T2}, v{V_TBW}")
    e(f"v_bfe_u32 v{t0}, v{V_N}, 2, 1"); e(f"v_lshlrev_b32 v{t0}, 4, v{t0}")
    e(f"v_lshrrev_b32 v{t1}, 3, v{V_N}"); e(f"v_lshl_add_u32 v{t0}, v{t1}, 2, v{t0}")
    e(f"v_and_b32 v{t1}, 3, v{V_N}"); e(f"v_add_u32 v{t0}, v{t0}, v{t1}")
    e(f"v_bfe_u32 v{t1}, v{t0}, 1, 3"); e(f"v_xor_b32 v{t1}, v{t1}, v{V_H}"); e(f"v_lshlrev_b32 v{t1}, 4, v{t1}")
    e(f"v_lshl_add_u32 v{V_TBR}, v{t0}, 7, v{t1}"); e(f"v_add_u32 v{V_TBR}, s{S_T2}, v{V_TBR}")
    e(f"s_lshl_b32 s{S_T2}, s{S_R}, 1"); e(f"s_add_u32 s{S_T2}, s{S_T2}, s{S_TW}"); e(f"s_mul_i32 s{S_T2}, s{S_T2}, {NSTEP*2048}")
    e(f"s_lshl_b32 s{S_T3}, s{S_J}, 13"); e(f"s_add_u32 s{S_HS}, s{S_T2}, s{S_T3}")
    e(f"s_lshl_b32 s{S_T3}, s{S_CW}, 10"); e(f"s_add_u32 s{S_HS}, s{S_HS}, s{S_T3}")
    e(f"s_mul_i32 s{S_T3}, s{S_J}, {7*2048}"); e(f"s_add_u32 s{S_T2}, s{S_T2}, s{S_T3}"); e(f"s_add_u32 s{S_T2}, s{S_T2}, {64*2048}")
    e(f"s_and_b32 s{S_T3}, s{S_J}, 1"); e(f"s_cmp_eq_u32 s{S_T3}, 0"); e(f"s_cselect_b32 s{S_HD}, {6*2048}, 0")
    e(f"s_add_u32 s{S_HD}, s{S_HD}, s{S_T2}")
    e(f"s_add_u32 s{S_T3}, s{S_T3}, s{S_CW}"); e(f"s_lshl_b32 s{S_T3}, s{S_T3}, 11"); e(f"s_add_u32 s{S_T2}, s{S_T2}, s{S_T3}")
    e(f"s_lshl_b32 s{S_T3}, s{S_CW}, 10"); e(f"s_add_u32 s{S_H0}, s{S_T2}, s{S_T3}"); e(f"s_add_u32 s{S_HD}, s{S_HD}, s{S_T3}")
    e(f"s_xor_b32 s{S_T3}, s{S_T3}, 1024"); e(f"s_add_u32 s{S_H1}, s{S_T2}, s{S_T3}")
    if HF_OFF:
        for s_ in (S_H0, S_H1, S_HD, S_HS): e(f"s_add_u32 s{s_}, s{s_}, {HF_OFF}")
    e(f"s_lshl_b32 s{S_T2}, s{S_R}, 4"); e(f"s_add_u32 s{S_T2}, s{S_T2}, s{S_J}"); e(f"s_lshl_b32 s{S_T2}, s{S_T2}, 8"); e(f"s_add_u32 s{S_T2}, s{S_T2}, {S_OFF}")
    e(f"v_lshlrev_b32 v{t0}, 3, v{V_N}"); e(f"v_add_u32 v{t0}, s{S_T2}, v{t0}")
    e(f"s_mov_b32 s{S_OOB}, 0x7ffffff0"); e(f"s_mov_b32 s{S_SPIN}, 0")
    e(f"v_cmp_gt_u32 vcc, 32, v0"); e(f"v_mov_b32 v{t1}, s{S_OOB}"); e("s_nop 0"); e(f"v_cndmask_b32 v{V_SOFF}, v{t1}, v{t0}, vcc")
    e(f"s_lshl_b32 s{S_T2}, s{S_W}, 1"); e(f"v_add_u32 v{t0}, s{S_T2}, v{V_H}")
    for k in range(8): e(f"v_cmp_eq_u32 s[{S_SEGM+2*k}:{S_SEGM+2*k+1}], {k}, v{t0}")
    for d in range(4):
        e(f"s_sub_i32 s{S_T2}, s{S_R}, {4*d}"); e(f"s_max_i32 s{S_T2}, s{S_T2}, 0"); e(f"s_min_i32 s{S_T2}, s{S_T2}, 4")
        e(f"s_lshl_b32 s{S_T2}, s{S_T2}, 3"); e(f"s_lshl_b64 s[{S_T0}:{S_T0+1}], 1, s{S_T2}"); e(f"s_sub_u32 s{S_T0}, s{S_T0}, 1")
        e(f"s_and_b32 s{S_FM+d}, s{S_T0}, 0x01010101")
    e(f"v_mov_b32 v{V_C1}, {hx(-2*math.sqrt(2/math.pi)*math.log2(math.e))}")

    fillers = deque()
    def F(txt, cost=4): fillers.append((lambda t=txt: e(t), cost))
    def FF(fn, cost=4): fillers.append((fn, cost))
    prio = deque()
    def fill(budget):
        while budget > 0 and (prio or fillers):
            if prio:
                prio.popleft()(); budget -= 8
            else:
                fn, cost = fillers.popleft(); fn(); budget -= cost
    def flush_fill():
        while prio or fillers: fill(1000)

    def params_stream():
        T = 144
        FF(lambda: g.wvm(tk_par[2]), 0)
        F(f"v_lshlrev_b32 v{PL}, 16, v{PL}"); F(f"v_lshlrev_b32 v{PI_}, 16, v{PI_}"); F(f"v_lshlrev_b32 v{PD}, 16, v{PD}")
        F(f"v_mul_f32 v{T}, {hx(math.log2(math.e))}, v{PD}")
        F(f"v_exp_f32 v{T}, v{T}", 8); F("s_nop 0")
        F(f"v_cvt_pk_bf16_f32 v{T}, v{T}, v{T}"); F(f"v_lshlrev_b32 v{T}, 16, v{T}")
        F(f"v_mul_f32 v{T+1}, v{T}, v{PL}"); F(f"v_mul_f32 v{T+2}, v{T}, v{PI_}")
        F(f"v_mul_f32 v{T+1}, {hx(math.log2(math.e))}, v{T+1}")
        F(f"v_mul_f32 v{T+2}, {hx(1/(2*math.pi))}, v{T+2}")
        F(f"v_exp_f32 v{T+1}, v{T+1}", 8)
        F(f"v_fract_f32 v{T+2}, v{T+2}"); F("s_nop 0")
        F(f"v_cos_f32 v{T+3}, v{T+2}", 8); F(f"v_sin_f32 v{T+4}, v{T+2}", 8); F("s_nop 0")
        F(f"v_mul_f32 v{V_LR}, v{T+1}, v{T+3}"); F(f"v_mul_f32 v{V_LI}, v{T+1}, v{T+4}")
        F(f"v_add_f32 v{T}, -1.0, v{V_LR}")
        F(f"v_mul_f32 v{T+1}, v{PL}, v{PL}"); F(f"v_fma_f32 v{T+1}, v{PI_}, v{PI_}, v{T+1}")
        F(f"v_rcp_f32 v{T+1}, v{T+1}", 8)
        F(f"v_mul_f32 v{T+2}, v{T}, v{PL}"); F(f"v_fma_f32 v{T+2}, v{V_LI}, v{PI_}, v{T+2}")
        F(f"v_mul_f32 v{T+3}, v{V_LI}, v{PL}"); F(f"v_fma_f32 v{T+3}, -v{T}, v{PI_}, v{T+3}")
        F(f"v_add_f32 v{T+1}, v{T+1}, v{T+1}")
        F(f"v_mul_f32 v{V_CR}, v{T+2}, v{T+1}"); F(f"v_mul_f32 v{V_CI}, v{T+3}, v{T+1}")
        def sq(dr, di, sr_, si):
            F(f"v_mul_f32 v{T+5}, v{si}, v{si}"); F(f"v_mul_f32 v{T+6}, v{sr_}, v{si}")
            F(f"v_fma_f32 v{dr}, v{sr_}, v{sr_}, -v{T+5}"); F(f"v_add_f32 v{di}, v{T+6}, v{T+6}")
        sq(V_L16R, V_L16I, V_LR, V_LI)
        for _ in range(3): sq(V_L16R, V_L16I, V_L16R, V_L16I)
        F(f"v_mul_f32 v{V_L128R}, 1.0, v{V_L16R}"); F(f"v_mul_f32 v{V_L128I}, 1.0, v{V_L16I}")
        sq(V_L128R, V_L128I, V_L128R, V_L128I)
        F(f"v_mov_b32 v{V_AR}, 1.0"); F(f"v_mov_b32 v{V_AI}, 0")
        F(f"v_mov_b32 v{T+7}, 1.0"); F(f"v_mov_b32 v{T+8}, 0")
        for k in range(1, 8):
            F(f"v_mul_f32 v{T+5}, v{T+8}, v{V_L16I}"); F(f"v_mul_f32 v{T+6}, v{T+8}, v{V_L16R}")
            F(f"v_fma_f32 v{T+6}, v{T+7}, v{V_L16I}, v{T+6}"); F(f"v_fma_f32 v{T+7}, v{T+7}, v{V_L16R}, -v{T+5}")
            F(f"v_mov_b32 v{T+8}, v{T+6}")
            F(f"v_cndmask_b32 v{V_AR}, v{V_AR}, v{T+7}, s[{S_SEGM+2*k}:{S_SEGM+2*k+1}]")
            F(f"v_cndmask_b32 v{V_AI}, v{V_AI}, v{T+8}, s[{S_SEGM+2*k}:{S_SEGM+2*k+1}]")
        for _ in range(2): sq(V_L128R, V_L128I, V_L128R, V_L128I)
    def gate_stream():
        T = VT+16
        FF(lambda: g.wvm(tk_gate), 0)
        for row, GX in enumerate((GX0, GX1)):
            acc = T + 8 + row
            for d in range(4):
                F(f"v_lshlrev_b32 v{T}, 16, v{GX+d}"); F(f"v_lshlrev_b32 v{T+1}, 16, v{GW+d}")
                F(f"v_and_b32 v{T+2}, 0xffff0000, v{GX+d}"); F(f"v_and_b32 v{T+3}, 0xffff0000, v{GW+d}")
                F(f"v_mul_f32 v{T}, v{T}, v{T+1}"); F(f"v_mul_f32 v{T+2}, v{T+2}, v{T+3}")
                F(f"v_cvt_pk_bf16_f32 v{T}, v{T}, v{T+2}")
                F(f"v_lshlrev_b32 v{T+1}, 16, v{T}"); F(f"v_and_b32 v{T+2}, 0xffff0000, v{T}")
                if d == 0: F(f"v_add_f32 v{acc}, v{T+1}, v{T+2}")
                else:
                    F(f"v_add_f32 v{acc}, v{acc}, v{T+1}"); F(f"v_add_f32 v{acc}, v{acc}, v{T+2}")
        a0, a1 = T+8, T+9
        for mod in ("row_shr:1 row_mask:0xf bank_mask:0xf", "row_shr:2 row_mask:0xf bank_mask:0xf", "row_shr:4 row_mask:0xf bank_mask:0xf", "row_shr:8 row_mask:0xf bank_mask:0xf",
                    "row_bcast:15 row_mask:0xa bank_mask:0xf", "row_bcast:31 row_mask:0xc bank_mask:0xf"):
            F("s_nop 1")
            F(f"v_add_f32_dpp v{a0}, v{a0}, v{a0} {mod}"); F(f"v_add_f32_dpp v{a1}, v{a1}, v{a1} {mod}")
        F(f"v_cvt_pk_bf16_f32 v{T}, v{a0}, v{a1}")
        F(f"v_lshlrev_b32 v{a0}, 16, v{T}"); F(f"v_and_b32 v{a1}, 0xffff0000, v{T}")
        F(f"v_mul_f32 v{a0}, {hx(-math.log2(math.e))}, v{a0}"); F(f"v_mul_f32 v{a1}, {hx(-math.log2(math.e))}, v{a1}")
        F(f"v_exp_f32 v{a0}, v{a0}", 8); F(f"v_exp_f32 v{a1}, v{a1}", 8); F("s_nop 0")
        F(f"v_add_f32 v{a0}, 1.0, v{a0}"); F(f"v_add_f32 v{a1}, 1.0, v{a1}")
        F(f"v_rcp_f32 v{a0}, v{a0}", 8); F(f"v_rcp_f32 v{a1}, v{a1}", 8); F("s_nop 0")
        F(f"v_cvt_pk_bf16_f32 v{T}, v{a0}, v{a1}")
        F(f"v_lshlrev_b32 v{T+2}, 16, v{T}"); F(f"v_and_b32 v{T+3}, 0xffff0000, v{T}")
        def st():
            e(f"v_cmp_eq_u32 vcc, 63, v{L}"); e(f"v_mov_b32 v{T+4}, s{S_OOB}"); e("s_nop 0")
            e(f"v_cndmask_b32 v{T+4}, v{T+4}, v{V_GOFF}, vcc")
            g.vm(f"buffer_store_dwordx2 v[{T+2}:{T+3}], v{T+4}, s[{S_WS}:{S_WS+3}], 0 offen")
        FF(st, 20)
    def side_stream():
        T = 156
        FF(lambda: g.wvm(tk_wd), 0)
        for k in range(8): F(f"v_or_b32 v{V_SJ2+k}, v{V_SJ2+k}, v{FW+8+k}")
        F(f"s_mov_b32 s{S_T2}, 0x05040100"); F(f"s_mov_b32 s{S_T3}, 0x07060302")
        F(f"v_perm_b32 v{T}, v{V_SJ+2}, v{V_SJ}, s{S_T2}"); F(f"v_perm_b32 v{T+1}, v{V_SJ+2}, v{V_SJ}, s{S_T3}")
        F(f"v_perm_b32 v{T+2}, v{V_SJ+3}, v{V_SJ+1}, s{S_T2}"); F(f"v_perm_b32 v{T+3}, v{V_SJ+3}, v{V_SJ+1}, s{S_T3}")
        def st():
            e(f"s_lshr_b32 s{S_T2}, s{S_R}, 1"); e(f"s_mul_i32 s{S_T2}, s{S_T2}, {NSTEP*2048}")
            e(f"s_and_b32 s{S_T3}, s{S_R}, 1"); e(f"s_lshl_b32 s{S_T3}, s{S_T3}, 10"); e(f"s_add_u32 s{S_T2}, s{S_T2}, s{S_T3}")
            e(f"s_add_u32 s{S_T2}, s{S_T2}, {WF_OFF}")
            e(f"s_lshl_b32 s{S_T3}, s{S_J}, 2"); e(f"s_add_u32 s{S_T3}, s{S_T3}, s{S_W}"); e(f"s_lshl_b32 s{S_T3}, s{S_T3}, 11"); e(f"s_add_u32 s{S_T3}, s{S_T3}, s{S_T2}")
            g.vm(f"buffer_store_dwordx4 {v4(T)}, v{V_L16B}, s[{S_WS}:{S_WS+3}], s{S_T3} offen")
            e(f"s_mul_i32 s{S_T3}, s{S_J}, 7"); e(f"s_add_u32 s{S_T3}, s{S_T3}, 64"); e(f"s_add_u32 s{S_T3}, s{S_T3}, s{S_W}"); e(f"s_lshl_b32 s{S_T3}, s{S_T3}, 11"); e(f"s_add_u32 s{S_T3}, s{S_T3}, s{S_T2}")
            g.vm(f"buffer_store_dwordx4 {v4(V_SJ2)}, v{V_L16B}, s[{S_WS}:{S_WS+3}], s{S_T3} offen")
            e(f"s_add_u32 s{S_T2}, s{S_W}, 4"); e(f"s_min_u32 s{S_T2}, s{S_T2}, 6"); e(f"s_sub_u32 s{S_T2}, s{S_T2}, s{S_W}"); e(f"s_lshl_b32 s{S_T2}, s{S_T2}, 11"); e(f"s_add_u32 s{S_T3}, s{S_T3}, s{S_T2}")
            g.vm(f"buffer_store_dwordx4 {v4(V_SJ2+4)}, v{V_L16B}, s[{S_WS}:{S_WS+3}], s{S_T3} offen")
        FF(st, 40)
    outsel = [0]
    def ffn_epi(R, soff_reg, soff_const):
        O = V_OUT + 4*outsel[0]; outsel[0] ^= 1
        T = VT
        seq = []
        for pr in range(4):
            i0, i1 = 2*pr, 2*pr+1
            b = T + 8*(pr & 1)
            a_ = [(f"v_mul_f32 v{b}, v{R+i0}, v{R+i0}",4), (f"v_mul_f32 v{b+1}, v{R+i1}, v{R+i1}",4),
                  (f"v_fmamk_f32 v{b}, v{b}, {hx(-2*math.sqrt(2/math.pi)*math.log2(math.e)*0.044715)}, v{V_C1}",4),
                  (f"v_fmamk_f32 v{b+1}, v{b+1}, {hx(-2*math.sqrt(2/math.pi)*math.log2(math.e)*0.044715)}, v{V_C1}",4),
                  (f"v_mul_f32 v{b}, v{R+i0}, v{b}",4), (f"v_mul_f32 v{b+1}, v{R+i1}, v{b+1}",4),
                  (f"v_exp_f32 v{b}, v{b}",8), (f"v_exp_f32 v{b+1}, v{b+1}",8),
                  (f"v_mul_f32 v{b+2}, v{R+i0}, v{R+8+i0}",4), (f"v_mul_f32 v{b+3}, v{R+i1}, v{R+8+i1}",4),
                  (f"v_add_f32 v{b}, 1.0, v{b}",4), (f"v_add_f32 v{b+1}, 1.0, v{b+1}",4),
                  (f"v_rcp_f32 v{b}, v{b}",8), (f"v_rcp_f32 v{b+1}, v{b+1}",8)]
            tail = [(f"v_mul_f32 v{b+2}, v{b+2}, v{b}",4), (f"v_mul_f32 v{b+3}, v{b+3}, v{b+1}",4),
                    (f"v_cvt_pk_bf16_f32 v{O+pr}, v{b+2}, v{b+3}",4)]
            seq.append((a_, tail))
        out = []
        out += seq[0][0]
        for pr in range(1, 4):
            out += seq[pr][0][:2] + seq[pr-1][1] + seq[pr][0][2:]
        out += [("s_nop 0",4)] + seq[3][1]
        for t, c in out: F(t, c)
        def st():
            e(f"s_add_u32 s{S_T2}, s{soff_reg}, {soff_const}")
            g.vm(f"buffer_store_dwordx4 {v4(O)}, v{V_L16B}, s[{S_WS}:{S_WS+3}], s{S_T2} offen")
        FF(st, 8)
    st_tok = {}
    ER, EI = VT+16, VT+17
    def scan1():
        T = VT+18
        F(f"v_mov_b32 v{ER}, v{SRE}"); F(f"v_mov_b32 v{EI}, v{SIM}")
        for i in range(1, 16):
            F(f"v_fma_f32 v{T}, v{V_LR}, v{ER}, v{SRE+i}"); F(f"v_fma_f32 v{T+1}, v{V_LR}, v{EI}, v{SIM+i}")
            F(f"v_fma_f32 v{T}, -v{V_LI}, v{EI}, v{T}"); F(f"v_fma_f32 v{EI}, v{V_LI}, v{ER}, v{T+1}")
            F(f"v_mov_b32 v{ER}, v{T}")
        def ew():
            g.lg(f"ds_write_b64 v{V_EW}, v[{ER}:{EI}]"); st_tok['Ew'] = True
        FF(ew, 4)
    EB = VT+20
    def combine():
        T = VT+36
        toks = []
        for k in range(8): FF(lambda k=k: toks.append(g.lg(f"ds_read_b64 v[{EB+2*k}:{EB+2*k+1}], v{V_ER} offset:{k*256}")), 4)
        FF(lambda: g.wlg(toks[7]), 0)
        ar_, ai_ = T, T+1
        F(f"v_mov_b32 v{V_PR}, 0"); F(f"v_mov_b32 v{V_PI}, 0")
        F(f"v_mov_b32 v{ar_}, v{EB}"); F(f"v_mov_b32 v{ai_}, v{EB+1}")
        for k in range(1, 8):
            m = f"s[{S_SEGM+2*k}:{S_SEGM+2*k+1}]"
            F(f"v_cndmask_b32 v{V_PR}, v{V_PR}, v{ar_}, {m}"); F(f"v_cndmask_b32 v{V_PI}, v{V_PI}, v{ai_}, {m}")
            F(f"v_fma_f32 v{T+2}, v{V_L16R}, v{ar_}, v{EB+2*k}"); F(f"v_fma_f32 v{T+3}, v{V_L16R}, v{ai_}, v{EB+2*k+1}")
            F(f"v_fma_f32 v{T+2}, -v{V_L16I}, v{ai_}, v{T+2}"); F(f"v_fma_f32 v{ai_}, v{V_L16I}, v{ar_}, v{T+3}")
            F(f"v_mov_b32 v{ar_}, v{T+2}")
        def st(): st_tok['S'] = g.vm(f"buffer_store_dwordx2 v[{ar_}:{ai_}], v{V_SOFF}, s[{S_WS}:{S_WS+3}], 0 offen sc0 sc1")
        FF(st, 4)
    def publish_flag():
        T = VT+40
        def fl():
            g.wvm(st_tok['S'])
            e(f"s_lshl_b32 s{S_T2}, s{S_J}, 4"); e(f"s_add_u32 s{S_T2}, s{S_T2}, s{S_R}")
            e(f"v_cmp_eq_u32 vcc, 0, v0"); e(f"v_mov_b32 v{T}, s{S_OOB}"); e(f"v_mov_b32 v{T+1}, s{S_T2}")
            e(f"v_cndmask_b32 v{T}, v{T}, v{T+1}, vcc"); e(f"v_mov_b32 v{T+1}, 1")
            g.vm(f"buffer_store_byte v{T+1}, v{T}, s[{S_DBG}:{S_DBG+3}], 0 offen sc0 sc1")
        FF(fl, 30)
    SB = VT+16
    lb = {}
    def lookback_poll_issue():
        def f():
            e(f"s_lshl_b32 s{S_T2}, s{S_J}, 4"); e(f"v_mov_b32 v{VT+46}, s{S_T2}")
            lb['poll'] = g.vm(f"buffer_load_dwordx4 v[{VT+4}:{VT+7}], v{VT+46}, s[{S_DBG}:{S_DBG+3}], 0 offen sc0 sc1")
        FF(f, 12)
    def lookback_check_and_load():
        def f():
            g.wvm(lb['poll'])
            g.label(f"{name}_chk")
            for d in range(4): e(f"v_readfirstlane_b32 s{S_T0+d}, v{VT+4+d}")
            e("s_nop 0")
            for d in range(4): e(f"s_and_b32 s{S_T0+d}, s{S_T0+d}, s{S_FM+d}")
            e(f"s_xor_b32 s{S_T0}, s{S_T0}, s{S_FM}")
            for d in range(1,4):
                e(f"s_xor_b32 s{S_T0+d}, s{S_T0+d}, s{S_FM+d}"); e(f"s_or_b32 s{S_T0}, s{S_T0}, s{S_T0+d}")
            e(f"s_cmp_eq_u32 s{S_T0}, 0")
            e(f"s_cbranch_scc0 {name}_spin")
            g.label(f"{name}_ok")
            e(f"s_lshl_b32 s{S_T2}, s{S_J}, 8"); e(f"s_add_u32 s{S_T2}, s{S_T2}, {S_OFF}")
            e(f"v_lshl_add_u32 v{VT+46}, v{V_N}, 3, s{S_T2}")
            e(f"v_mov_b32 v{VT+47}, s{S_OOB}")
            for m in range(14, -1, -1):
                e(f"s_cmp_gt_u32 s{S_R}, {m}")
                e(f"s_cselect_b64 vcc, -1, 0")
                e(f"s_sub_u32 s{S_T2}, s{S_R}, {m+1}"); e(f"s_max_i32 s{S_T2}, s{S_T2}, 0"); e(f"s_lshl_b32 s{S_T2}, s{S_T2}, 12")
                e(f"v_cndmask_b32 v{VT+12}, v{VT+47}, v{VT+46}, vcc")
                lb[m] = g.vm(f"buffer_load_dwordx2 v[{SB+2*(14-m)}:{SB+2*(14-m)+1}], v{VT+12}, s[{S_WS}:{S_WS+3}], s{S_T2} offen sc0 sc1")
        FF(f, 400)

    steps = []
    for s in range(32):
        c, sp = s >> 2, s & 3
        slot = c % 4; lo = (slot & 1)*32768
        pb = s & 1
        reads = [
            ("X0", f"ds_read_b128 {xreg(0,s)}, v{V_XA0+sp} offset:{lo}"),
            ("BR", f"ds_read_b128 {v4(FBR+4*pb)}, v{V_BA+sp} offset:{lo}"),
            ("BI", f"ds_read_b128 {v4(FBI+4*pb)}, v{V_BA+sp} offset:{lo+1024}"),
            ("W0", f"ds_read_b64_tr_b16 v[{FW+4*pb}:{FW+4*pb+1}], v{V_WA} offset:{lo+sp*4096}"),
            ("W1", f"ds_read_b64_tr_b16 v[{FW+4*pb+2}:{FW+4*pb+3}], v{V_WA} offset:{lo+sp*4096+256}"),
            ("X1", f"ds_read_b128 {xreg(1,s)}, v{V_XA1+sp} offset:{lo}"),
        ]
        mf = [(SRE, xreg(0,s), v4(FBR+4*pb), s == 0, ["X0","BR"]),
              (SIM, xreg(0,s), v4(FBI+4*pb), s == 0, ["BI"]),
              (P0, v4(FW+4*pb), xreg(0,s), s == 0, ["W0","W1"]),
              (P1, v4(FW+4*pb), xreg(1,s), s == 0, ["X1"])]
        steps.append(dict(chunk=c, reads=reads, mf=mf, look=1, ph="A", s=s))
    for q, (a0, a1) in enumerate(((Q0, Q1), (P0, P1))):
        for s in range(32):
            c = 8 + 2*q + (s >> 4); sp = s & 15
            slot = c % 4; lo = (slot & 1)*32768
            pb = s & 3
            reads = [("W0", f"ds_read_b64_tr_b16 v[{FW+4*pb}:{FW+4*pb+1}], v{V_WB} offset:{lo+sp*1024}"),
                     ("W1", f"ds_read_b64_tr_b16 v[{FW+4*pb+2}:{FW+4*pb+3}], v{V_WB} offset:{lo+sp*1024+256}")]
            mf = [(a0, v4(FW+4*pb), xreg(0,s), s == 0, ["W0","W1"]), (a1, v4(FW+4*pb), xreg(1,s), s == 0, [])]
            steps.append(dict(chunk=c, reads=reads, mf=mf, look=2, ph="BC"[q], s=s))
    for s in range(32):
        c = 12; lo = 0; pb = s & 3
        reads = [("W0", f"ds_read_b64_tr_b16 v[{FW+4*pb}:{FW+4*pb+1}], v{V_WD0} offset:{lo+s*512}"),
                 ("W1", f"ds_read_b64_tr_b16 v[{FW+4*pb+2}:{FW+4*pb+3}], v{V_WD1} offset:{lo+s*512}")]
        mf = [(Q0, v4(FW+4*pb), xreg(0,s), s == 0, ["W0","W1"])]
        steps.append(dict(chunk=c, reads=reads, mf=mf, look=3, ph="D", s=s))

    addr_hi = {"A": [V_XA0+i for i in range(4)] + [V_XA1+i for i in range(4)] + [V_BA+i for i in range(4)] + [V_WA],
               "BC": [V_WB], "D": [V_WD0, V_WD1]}
    cur_hi = {r_: 0 for grp in addr_hi.values() for r_ in grp}
    tokens = {}
    entered = set()
    def enter_chunk(c):
        entered.add(c)
        if c == 9:
            while 'Ew' not in st_tok: fill(8)
        while c not in chunk_tok: fill(8)
        g.wlg(g.lgn)
        g.wvm(chunk_tok[c])
        e("s_barrier")
        if diag:
            e(f"s_memtime s[{S_T0}:{S_T0+1}]"); e("s_waitcnt lgkmcnt(0)"); e(f"v_writelane_b32 v55, s{S_T0}, {c}")
        if c + 3 <= 12:
            for f in dma_chunk(c+3): prio.append(f)
        hi = (c % 4) >> 1
        grp = addr_hi["A"] if c < 8 else (addr_hi["BC"] if c < 12 else addr_hi["D"])
        for r_ in grp:
            if cur_hi[r_] != hi:
                e(f"v_xor_b32 v{r_}, 0x10000, v{r_}"); cur_hi[r_] = hi
    issued = 0
    pend = deque()
    def queue_reads(upto):
        nonlocal issued
        while issued <= upto and issued < len(steps):
            for nm, t in steps[issued]["reads"]: pend.append((issued, nm, t))
            issued += 1
    def issue_reads(n):
        k = 0
        while pend and k < n:
            si, nm, t = pend[0]
            c = steps[si]["chunk"]
            if c not in entered: enter_chunk(c)
            pend.popleft(); tokens[(si, nm)] = g.lg(t); k += 1
        return k
    params_stream(); gate_stream(); side_stream()
    queue_reads(0); issue_reads(99)
    nsteps = len(steps)
    for si, st in enumerate(steps):
        ph, s = st["ph"], st["s"]
        if ph == "B" and s == 0:
            flush_fill()
        if ph == "B" and s == 3:
            scan1(); ffn_epi(P0, S_H0, 0)
        if ph == "B" and s == 16:
            ffn_epi(P1, S_H1, 0); combine()
        if ph == "C" and s == 0:
            flush_fill()
        if ph == "C" and s == 3:
            ffn_epi(Q0, S_H0, 4096); publish_flag(); ffn_epi(Q1, S_H1, 4096)
        if ph == "D" and s == 0:
            flush_fill()
        if ph == "D" and s == 6:
            lookback_poll_issue(); ffn_epi(P0, S_H0, 8192)
        if ph == "D" and s == 20:
            flush_fill(); lookback_check_and_load(); flush_fill(); ffn_epi(P1, S_H1, 8192)
        look = st["look"]
        queue_reads(si + look)
        nm_ = len(st["mf"])
        for mi, (D, A, B, first, need) in enumerate(st["mf"]):
            for nmn in need:
                while (si, nmn) not in tokens: issue_reads(1)
                g.wlg(tokens[(si, nmn)])
            e(f"v_mfma_f32_32x32x16_bf16 {v16(D)}, {A}, {B}, {'0' if first else v16(D)}")
            nr = (len(pend) + (nm_ - mi) - 1)//(nm_ - mi)
            k = issue_reads(min(nr, 2))
            fill(24 - 4*k)
    flush_fill()
    if diag: e(f"s_memtime s[{S_ST+4}:{S_ST+5}]")
    T = VT+8
    cr_, ci_ = T, T+1
    g.wvm(lb[14]); e(f"v_mov_b32 v{cr_}, v{SB}"); e(f"v_mov_b32 v{ci_}, v{SB+1}")
    for m in range(13, -1, -1):
        g.wvm(lb[m]); b = SB + 2*(14-m)
        e(f"v_fma_f32 v{T+2}, v{V_L128R}, v{cr_}, v{b}"); e(f"v_fma_f32 v{T+3}, v{V_L128R}, v{ci_}, v{b+1}")
        e(f"v_fma_f32 v{T+2}, -v{V_L128I}, v{ci_}, v{T+2}"); e(f"v_fma_f32 v{ci_}, v{V_L128I}, v{cr_}, v{T+3}")
        e(f"v_mov_b32 v{cr_}, v{T+2}")
    hr, hi_ = T+4, T+5
    e(f"v_fma_f32 v{hr}, v{V_AR}, v{cr_}, v{V_PR}"); e(f"v_fma_f32 v{hi_}, v{V_AR}, v{ci_}, v{V_PI}")
    e(f"v_fma_f32 v{hr}, -v{V_AI}, v{ci_}, v{hr}"); e(f"v_fma_f32 v{hi_}, v{V_AI}, v{cr_}, v{hi_}")
    wt = []
    for i in range(16):
        e(f"v_fma_f32 v{T+2}, v{V_LR}, v{hr}, v{SRE+i}"); e(f"v_fma_f32 v{T+3}, v{V_LR}, v{hi_}, v{SIM+i}")
        e(f"v_fma_f32 v{T+2}, -v{V_LI}, v{hi_}, v{T+2}"); e(f"v_fma_f32 v{hi_}, v{V_LI}, v{hr}, v{T+3}")
        e(f"v_mov_b32 v{hr}, v{T+2}")
        e(f"v_mul_f32 v{T+6}, v{V_CR}, v{hr}"); e(f"v_mul_f32 v{T+7}, v{V_CR}, v{hi_}")
        e(f"v_fma_f32 v{T+6}, -v{V_CI}, v{hi_}, v{T+6}"); e(f"v_fma_f32 v{T+7}, -v{V_CI}, v{hr}, -v{T+7}")
        if i % 2 == 0: e(f"v_xor_b32 v{T+9}, {(i>>1)*16}, v{V_TBW}")
        e(f"v_cvt_pk_bf16_f32 v{T+8}, v{T+6}, v{T+7}")
        wt.append(g.lg(f"ds_write_b32 v{T+9}, v{T+8} offset:{i*128}"))
    ffn_epi(Q0, S_HD, 0)
    rt = []
    g.wlg(wt[-1])
    RB = SB
    for sg in range(4):
        e(f"v_xor_b32 v{T+6}, {sg*32}, v{V_TBR}")
        rt.append(g.lg(f"ds_read_b128 {v4(RB+4*sg)}, v{T+6}"))
    flush_fill()
    for sg in range(4):
        g.wlg(rt[sg]); e(f"s_add_u32 s{S_T2}, s{S_HS}, {sg*2048}")
        g.vm(f"buffer_store_dwordx4 {v4(RB+4*sg)}, v{V_L16B}, s[{S_WS}:{S_WS+3}], s{S_T2} offen")
    if diag:
        e("s_waitcnt vmcnt(0)")
        e(f"s_memrealtime s[{S_ST+6}:{S_ST+7}]"); e(f"s_memtime s[{S_ST+8}:{S_ST+9}]"); e("s_waitcnt lgkmcnt(0)")
        e(f"s_cmp_eq_u32 s{S_W}, 0"); e(f"s_cbranch_scc0 {name}_end")
        for k in range(10): e(f"v_mov_b32 v{16+k}, s{S_ST+k}")
        e("v_mov_b32 v26, 0"); e("v_mov_b32 v27, 0")
        e(f"s_mul_i32 s{S_T2}, s2, 64"); e(f"s_add_u32 s{S_T2}, s{S_T2}, {DIAG_OFF}"); e("v_mov_b32 v28, 0")
        e(f"v_cmp_eq_u32 vcc, 0, v{L}"); e(f"s_and_saveexec_b64 s[{S_T0}:{S_T0+1}], vcc")
        e(f"buffer_store_dwordx4 v[16:19], v28, s[{S_WS}:{S_WS+3}], s{S_T2} offen")
        e(f"buffer_store_dwordx4 v[20:23], v28, s[{S_WS}:{S_WS+3}], s{S_T2} offen offset:16")
        e(f"buffer_store_dwordx4 v[24:27], v28, s[{S_WS}:{S_WS+3}], s{S_T2} offen offset:32")
        e(f"s_mov_b64 exec, -1"); e(f"v_lshlrev_b32 v28, 2, v{L}"); e(f"s_lshl_b32 s{S_T2}, s2, 8"); e(f"s_add_u32 s{S_T2}, s{S_T2}, {DIAG_OFF + 0x10000}")
        e(f"buffer_store_dword v55, v28, s[{S_WS}:{S_WS+3}], s{S_T2} offen")
        e("s_waitcnt vmcnt(0)")
    g.label(f"{name}_end")
    e("s_endpgm")
    g.label(f"{name}_spin")
    e(f"s_add_u32 s{S_SPIN}, s{S_SPIN}, 1"); e(f"s_cmp_gt_u32 s{S_SPIN}, 20000"); e(f"s_cbranch_scc1 {name}_ok")
    e("s_sleep 4")
    e(f"buffer_load_dwordx4 v[{VT+4}:{VT+7}], v{VT+46}, s[{S_DBG}:{S_DBG+3}], 0 offen sc0 sc1")
    e("s_waitcnt vmcnt(0)")
    e(f"s_branch {name}_chk")
    g(kernel_desc(name, 512, 102, 256))
    return g.text()

if __name__ == "__main__":
    name = "gated_mix__ssm_conv_s5__glu_gated_geglu__prompt_kernel"
    txt = f"; @launch grid=(256,1,1) block=(256,1,1) lds={LDS_TOTAL}\n.amdgcn_target \"amdgcn-amd-amdhsa--gfx950\"\n" + gen_k1(name, True)
    open("k1.s", "w").write(txt)
    print(len(txt.splitlines()), "lines")
```

```python
from asmlib import *

HF_OFF = 0
WF_OFF = 0x00C00000
G_OFF  = 0x00F00000
S_OFF  = 0x00F10000
DIAG_OFF = 0x02000000
WS_RECORDS = 0x04000000
NSTEP = 176

def gen_k2(name, depth=8, diag=False, mode="full"):
    a = Asm()
    a(kernel_head(name))
    D = depth
    a.e("s_cmp_ge_u32 s2, 256")
    a.e(f"s_cbranch_scc1 {name}_end")
    if diag:
        a.e("s_memrealtime s[40:41]")
        a.e("s_memtime s[44:45]")
    a.e("s_load_dwordx2 s[4:5], s[0:1], 128")
    a.e("s_load_dwordx2 s[8:9], s[0:1], 112")
    a.e("s_load_dwordx2 s[12:13], s[0:1], 0")
    a.e("s_load_dwordx2 s[16:17], s[0:1], 64")
    a.e("v_lshrrev_b32 v1, 6, v0")
    a.e("v_and_b32 v2, 63, v0")
    a.e("s_and_b32 s27, s2, 7")
    a.e("v_readfirstlane_b32 s20, v1")
    a.e("s_lshr_b32 s28, s2, 3")
    a.e("s_and_b32 s21, s28, 3")
    a.e("s_lshl_b32 s27, s27, 2")
    a.e("s_add_u32 s21, s21, s27")
    a.e("s_lshr_b32 s22, s28, 2")
    a.e("v_lshlrev_b32 v3, 4, v2")
    a.e("s_mul_i32 s23, s21, %d" % (NSTEP*2048))
    a.e("s_mul_i32 s24, s22, %d" % (NSTEP*2048))
    a.e("s_add_u32 s24, s24, %d" % WF_OFF)
    if HF_OFF: a.e("s_add_u32 s23, s23, %d" % HF_OFF)
    a.e("s_mul_i32 s27, s20, %d" % (28*2048))
    a.e("s_add_u32 s27, s27, %d" % (64*2048))
    a.e("s_add_u32 s25, s23, s27")
    a.e("s_add_u32 s26, s24, s27")
    a.e("s_lshl_b32 s27, s20, 15")
    a.e("s_add_u32 s23, s23, s27")
    a.e("s_add_u32 s24, s24, s27")
    a.e("s_waitcnt lgkmcnt(0)")
    a.e("s_mov_b32 s6, %d" % WS_RECORDS); a.e("s_mov_b32 s7, 0x20000")
    a.e("s_mov_b32 s10, %d" % (2048*512*4)); a.e("s_mov_b32 s11, 0x20000")
    a.e("s_mov_b32 s14, %d" % (2048*512*2)); a.e("s_mov_b32 s15, 0x20000")
    a.e("s_mov_b32 s18, 1024"); a.e("s_mov_b32 s19, 0x20000")
    ACCS, ACCF, GV, XV, DV = 128, 192, 64, 96, 112
    def stage(st, k): return f"a[{16*st+4*k}:{16*st+4*k+3}]"
    steps = [("S", i) for i in range(16)] + [("F", i) for i in range(28)]
    cur = {"H": "s23", "W": "s24"}
    def issue(idx):
        kind, i = steps[idx]
        if kind == "F" and i == 0:
            a.e("s_mov_b32 s23, s25"); a.e("s_mov_b32 s24, s26")
        st = idx % D
        a.e(f"buffer_load_dwordx4 {stage(st,0)}, v3, s[4:7], s23 offen")
        a.e(f"buffer_load_dwordx4 {stage(st,2)}, v3, s[4:7], s24 offen")
        a.e(f"buffer_load_dwordx4 {stage(st,1)}, v3, s[4:7], s23 offen offset:1024")
        a.e(f"buffer_load_dwordx4 {stage(st,3)}, v3, s[4:7], s24 offen offset:1024")
        a.e("s_add_u32 s23, s23, 2048"); a.e("s_add_u32 s24, s24, 2048")
    for idx in range(D): issue(idx)
    a.e("v_lshrrev_b32 v4, 5, v2")
    a.e("v_lshlrev_b32 v5, 6, v4")
    a.e("s_lshl_b32 s27, s21, 8")
    a.e("s_add_u32 s27, s27, %d" % G_OFF)
    for tt in range(2):
        for q in range(4):
            a.e(f"buffer_load_dwordx4 v[{GV+16*tt+4*q}:{GV+16*tt+4*q+3}], v5, s[4:7], s27 offen offset:{tt*128+q*16}")
    a.e("s_lshr_b32 s29, s20, 1")
    a.e("s_and_b32 s30, s20, 1")
    a.e("v_and_b32 v6, 31, v2")
    a.e("s_lshl_b32 s27, s21, 1")
    a.e("s_add_u32 s27, s27, s29")
    a.e("s_lshl_b32 s31, s27, 14")
    a.e("s_lshl_b32 s27, s22, 1")
    a.e("s_add_u32 s27, s27, s30")
    a.e("s_lshl_b32 s32, s27, 5")
    a.e("s_add_u32 s31, s31, s32")
    a.e("v_lshlrev_b32 v7, 13, v4")
    a.e("v_add_u32 v7, v7, v6")
    a.e("v_lshlrev_b32 v8, 1, v7")
    a.e("v_lshlrev_b32 v9, 2, v7")
    a.e("s_lshl_b32 s33, s31, 1")
    a.e("s_lshl_b32 s34, s31, 2")
    for i in range(16): a.e(f"v_mov_b32 v{XV+i}, 0")
    a.e(f"v_mov_b32 v{DV}, 0")
    a.e("v_add_u32 v10, s32, v6"); a.e("v_lshlrev_b32 v10, 1, v10")
    a.e(f"buffer_load_short_d16_hi v{DV}, v10, s[16:19], 0 offen")
    for i in range(16):
        if i % 4 == 0 and i: a.e("s_add_u32 s33, s33, 4096")
        a.e(f"buffer_load_short_d16_hi v{XV+i}, v8, s[12:15], s33 offen offset:{(i%4)*1024}")
    NEPI = 8 + 1 + 16
    n = len(steps)
    for idx in range(n):
        kind, i = steps[idx]
        acc = ACCS if kind == "S" else ACCF
        rem = min(D - 1, n - 1 - idx)
        cnt = 4*rem
        if idx < D: cnt += NEPI
        cnt = min(cnt, 63)
        a.e(f"s_waitcnt vmcnt({cnt})")
        st = idx % D
        for tt in range(2):
            for dt in range(2):
                r = acc + 16*(2*tt+dt)
                c = "0" if i == 0 else f"v[{r}:{r+15}]"
                if mode != "nomfma":
                    a.e(f"v_mfma_f32_32x32x16_bf16 v[{r}:{r+15}], {stage(st,tt)}, {stage(st,2+dt)}, {c}")
        if idx + D < n: issue(idx + D)
    a.e("s_waitcnt vmcnt(0)")
    a.e("s_nop 7"); a.e("s_nop 7")
    if diag:
        a.e("s_memtime s[46:47]")
    for t4 in range(4):
        tt = t4 >> 1
        for i in range(16):
            S = ACCS+16*t4+i; F = ACCF+16*t4+i
            a.e(f"v_sub_f32 v{S}, v{S}, v{F}")
        for i in range(16):
            S = ACCS+16*t4+i; F = ACCF+16*t4+i
            a.e(f"v_fma_f32 v{F}, v{GV+16*tt+i}, v{S}, v{F}")
    a.e("v_lshlrev_b32 v11, 4, v2")
    a.e(f"s_cmp_eq_u32 s20, 0"); a.e(f"s_cbranch_scc1 {name}_w0")
    a.e(f"s_cmp_eq_u32 s20, 1"); a.e(f"s_cbranch_scc1 {name}_w1")
    a.e(f"s_cmp_eq_u32 s20, 2"); a.e(f"s_cbranch_scc1 {name}_w2")
    def red(w):
        for q in range(4):
            if q == w: continue
            slot = (w - q - 1) & 3
            base = (q*3 + slot)*4096
            for j in range(4):
                r = ACCF + 16*q + 4*j
                a.e(f"ds_write_b128 v11, v[{r}:{r+3}] offset:{base + j*1024}")
        a.e("s_waitcnt lgkmcnt(0)")
        a.e("s_barrier")
        for slot in range(3):
            base = (w*3 + slot)*4096
            for j in range(4):
                r = ACCS + 16*slot + 4*j
                a.e(f"ds_read_b128 v[{r}:{r+3}], v11 offset:{base + j*1024}")
        tt = w >> 1
        for i in range(16):
            a.e(f"v_mul_f32 v{XV+i}, v{XV+i}, v{DV}")
        for i in range(16):
            a.e(f"v_fma_f32 v{ACCF+16*w+i}, v{XV+i}, v{GV+16*tt+i}, v{ACCF+16*w+i}")
        for slot in range(3):
            a.e(f"s_waitcnt lgkmcnt({8-4*slot})")
            for i in range(16):
                a.e(f"v_add_f32 v{ACCF+16*w+i}, v{ACCF+16*w+i}, v{ACCS+16*slot+i}")
        for i in range(16):
            if i % 2 == 0 and i: a.e("s_add_u32 s34, s34, 4096")
            a.e(f"buffer_store_dword v{ACCF+16*w+i}, v9, s[8:11], s34 offen offset:{(i%2)*2048}")
        a.e(f"s_branch {name}_fin")
    a.label(f"{name}_w3"); red(3)
    a.label(f"{name}_w2"); red(2)
    a.label(f"{name}_w1"); red(1)
    a.label(f"{name}_w0"); red(0)
    a.label(f"{name}_fin")
    if diag:
        a.e("s_waitcnt vmcnt(0)")
        a.e("s_memrealtime s[42:43]")
        a.e("s_memtime s[48:49]")
        a.e("s_waitcnt lgkmcnt(0)")
        a.e("s_cmp_eq_u32 s20, 0"); a.e(f"s_cbranch_scc0 {name}_end")
        for k in range(10): a.e(f"v_mov_b32 v{16+k}, s{40+k}")
        a.e("v_mov_b32 v26, 0"); a.e("v_mov_b32 v27, 0")
        a.e("s_mul_i32 s27, s2, 64"); a.e("s_add_u32 s27, s27, %d" % DIAG_OFF)
        a.e("v_mov_b32 v28, 0")
        a.e("v_cmp_eq_u32 vcc, 0, v2"); a.e("s_and_saveexec_b64 s[36:37], vcc")
        a.e("buffer_store_dwordx4 v[16:19], v28, s[4:7], s27 offen")
        a.e("buffer_store_dwordx4 v[20:23], v28, s[4:7], s27 offen offset:16")
        a.e("buffer_store_dwordx4 v[24:27], v28, s[4:7], s27 offen offset:32")
        a.e("s_waitcnt vmcnt(0)")
    a.label(f"{name}_end")
    a.e("s_endpgm")
    a(kernel_desc(name, 512, 102, 256))
    return a.text()

if __name__ == "__main__":
    import sys
    depth = int(sys.argv[1]) if len(sys.argv) > 1 else 8
    mode = sys.argv[2] if len(sys.argv) > 2 else "full"
    name = "gated_mix__ssm_conv_s5__glu_gated_geglu__prompt_kernel"
    txt = "; @launch grid=(256,1,1) block=(256,1,1) lds=49152\n.amdgcn_target \"amdgcn-amd-amdhsa--gfx950\"\n" + gen_k2(name, depth, True, mode)
    open(f"k2_d{depth}_{mode}.s", "w").write(txt)
```

```python
import sys
from gen_k1 import gen_k1, LDS_TOTAL
from gen_k2 import gen_k2
hdr = open("gated_mix__ssm_conv_s5__glu_gated_geglu__prompt.s.ref").read().split("\n")
cm = [l for l in hdr if l.startswith(";") and "@launch" not in l and "Override launch" not in l and "grid=ceil" not in l]
base = "gated_mix__ssm_conv_s5__glu_gated_geglu__prompt"
k1 = base + "_p1_kernel"; k2 = base + "_kernel"
txt = "\n".join(cm) + "\n"
txt += f"; @launch kernel={k1} grid=(256,1,1) block=(256,1,1) lds={LDS_TOTAL}\n"
txt += f"; @launch kernel={k2} grid=(256,1,1) block=(256,1,1) lds=49152\n"
txt += ".amdgcn_target \"amdgcn-amd-amdhsa--gfx950\"\n"
txt += gen_k1(k1, False) + gen_k2(k2, 8, False)
out = sys.argv[1] if len(sys.argv) > 1 else "two_k.s"
open(out, "w").write(txt)
print(out, len(txt))
```

```python
from asmlib import *
from collections import deque
import math, struct, sys

HF_OFF = 0
WF_OFF = 0x00C00000
G_OFF  = 0x00F00000
S_OFF  = 0x00F10000
FL_OFF = 0x00F40000
DIAG_OFF = 0x02000000
WS_RECORDS = 0x04000000
NSTEP = 176
LOG2E = math.log2(math.e)
GC1 = -2*math.sqrt(2/math.pi)*LOG2E
GC2 = GC1*0.044715

def f2u(x): return struct.unpack("<I", struct.pack("<f", x))[0]
def hx(x): return "0x%08x" % f2u(x)
TRANS = ("v_exp_f32", "v_rcp_f32", "v_sin_f32", "v_cos_f32", "v_log_f32", "v_rsq_f32", "v_sqrt_f32")

class Gen(Asm):
    def __init__(self):
        super().__init__()
        self.vmn = 0; self.vmd = 0; self.lgn = 0; self.lgd = 0; self.cost = 0
    def e(self, s):
        self.lines.append("    " + s)
        self.cost += 2 if s.startswith(TRANS) else 1
    def vm(self, t): self.e(t); self.vmn += 1; return self.vmn
    def lg(self, t): self.e(t); self.lgn += 1; return self.lgn
    def wvm(self, tok):
        if tok > self.vmd:
            n = min(self.vmn - tok, 63); self.e(f"s_waitcnt vmcnt({n})"); self.vmd = self.vmn - n
    def wlg(self, tok):
        if tok > self.lgd:
            n = min(self.lgn - tok, 15); self.e(f"s_waitcnt lgkmcnt({n})"); self.lgd = self.lgn - n
    def vm_all_done(self): self.vmd = self.vmn

S_X, S_BRE, S_BIM, S_WG, S_WU, S_WS, S_DBG = 4, 8, 12, 16, 20, 24, 28
S_LRE, S_LIM, S_CRE, S_CIM, S_LDT = 32, 34, 36, 38, 40
S_SRD2 = 32
S_DSK = 42
S_WD, S_GW = 44, 46
S_R, S_J, S_W, S_CW, S_TW = 48, 49, 50, 51, 52
S_XB, S_BB, S_WA, S_WBC, S_WDo = 53, 54, 55, 56, 57
S_LX, S_LB = 58, 59
S_T0, S_T1, S_T2, S_T3 = 60, 61, 62, 63
S_SEGM = 64
S_RMASK = 80
S_RB, S_NB = 81, 82
S_HP, S_WP = 83, 3
S_H0, S_H1, S_HD, S_HS = 84, 85, 86, 87
S_OUT = 88
S_HP2, S_WP2 = 92, 93
S_P2A, S_P2B = 94, 95
S_DMA, S_SPIN, S_OOB = 98, 99, 100
S_STAMP = 96
S_NONCE = 101

V_LANE = 1
V_VX = 2; V_VB = 6; V_WGA, V_WUA = 7, 8
V_WG = 9; V_WU = 13
V_XA0, V_XA1, V_BA = 17, 21, 25
V_WA, V_WB, V_WD0, V_WD1 = 29, 30, 31, 32
V_LR, V_LI, V_CR, V_CI, V_L16R, V_L16I, V_L128R, V_L128I, V_AR, V_AI, V_PR, V_PI = range(33, 45)
V_EW, V_ER, _unused47, V_C1, V_TBW, V_TBR, V_SOFF, V_GOFF = range(45, 53)
V_SJ = 56
V_L16B, V_H, V_N, V_DIAG = 60, 61, 62, 63
SRE, SIM, P0, P1, Q0, Q1 = 64, 80, 96, 112, 128, 144
FBR, FBI, FW = 160, 172, 184
V_OUT = 200
VT = 208
ACCS, ACCF, HR = 64, 128, 192
GV, XV, DV = 12, 44, 10

LDS_E = 131072
LDS_TB = 131072 + 2048
LDS_TOTAL = 131072 + 2048 + 16384

def xreg(tt, s): return f"a[{(tt*32+s)*4}:{(tt*32+s)*4+3}]"
def v4(r): return f"v[{r}:{r+3}]"
def v16(r): return f"v[{r}:{r+15}]"
def srd(s): return f"s[{s}:{s+3}]"
def sp(s): return f"s[{s}:{s+1}]"

def gen(name, diag=False, fused=True, nt=True, code_bytes=24576, opts=None):
    opts = opts or {}
    g = Gen(); e = g.e
    NT = " nt" if nt else ""
    SC = " sc1"
    L = V_LANE
    nstamp = [0]
    def stamp():
        if not diag: return
        e(f"s_memtime {sp(S_STAMP)}"); e("s_waitcnt lgkmcnt(0)"); g.lgd = g.lgn
        e(f"v_writelane_b32 v{V_DIAG}, s{S_STAMP}, {nstamp[0]}"); nstamp[0] += 1
    g(kernel_head(name))
    e("s_cmp_ge_u32 s2, 256"); e(f"s_cbranch_scc1 {name}_end")
    e(f"s_load_dwordx2 {sp(S_X)}, s[0:1], 0")
    e(f"s_load_dwordx2 {sp(S_BRE)}, s[0:1], 24")
    e(f"s_load_dwordx2 {sp(S_BIM)}, s[0:1], 32")
    e(f"s_load_dwordx2 {sp(S_WG)}, s[0:1], 80")
    e(f"s_load_dwordx2 {sp(S_WU)}, s[0:1], 88")
    e(f"s_load_dwordx4 s[{S_LRE}:{S_LRE+3}], s[0:1], 8")
    e(f"s_load_dwordx4 s[{S_CRE}:{S_CRE+3}], s[0:1], 40")
    e(f"s_load_dwordx4 s[{S_LDT}:{S_LDT+3}], s[0:1], 56")
    e(f"s_load_dwordx4 s[{S_WD}:{S_WD+3}], s[0:1], 96")
    e(f"s_load_dwordx2 {sp(S_DBG)}, s[0:1], 120")
    e(f"s_load_dwordx2 {sp(S_WS)}, s[0:1], 128")
    e(f"s_load_dwordx2 {sp(S_OUT)}, s[0:1], 112")
    if diag:
        e(f"s_memrealtime {sp(S_P2A)}"); e(f"s_memtime {sp(S_STAMP)}")
    g.label(f"{name}_pc") if False else None
    e(f"s_getpc_b64 {sp(S_T0)}")
    g.label(f"{name}_pcref")
    e(f"v_lshlrev_b32 v{VT}, 4, v0")
    e(f"v_mov_b32 v{VT+1}, {name}_codeend-{name}_pcref-16")
    for i in range((code_bytes + 4095)//4096):
        e(f"v_min_u32 v{VT+2}, v{VT}, v{VT+1}")
        g.vm(f"global_load_dwordx4 v[{VT+4}:{VT+7}], v{VT+2}, {sp(S_T0)}")
        e(f"v_add_u32 v{VT}, 0x1000, v{VT}")
    e(f"v_and_b32 v{L}, 63, v0")
    e(f"v_lshrrev_b32 v{VT+1}, 6, v0")
    e(f"s_and_b32 s{S_T2}, s2, 7")
    e(f"v_readfirstlane_b32 s{S_W}, v{VT+1}")
    e(f"s_lshr_b32 s{S_T3}, s2, 3")
    e(f"s_lshr_b32 s{S_R}, s{S_T2}, 2"); e(f"s_lshl_b32 s{S_R}, s{S_R}, 3")
    e(f"s_and_b32 s{S_J}, s{S_T3}, 7"); e(f"s_add_u32 s{S_R}, s{S_R}, s{S_J}")
    e(f"s_and_b32 s{S_J}, s{S_T2}, 3"); e(f"s_lshl_b32 s{S_J}, s{S_J}, 2")
    e(f"s_lshr_b32 s{S_NB}, s{S_T3}, 3"); e(f"s_add_u32 s{S_J}, s{S_J}, s{S_NB}")
    e(f"s_lshl_b32 s{S_RB}, s{S_T2}, 2"); e(f"s_and_b32 s{S_NB}, s{S_T3}, 3"); e(f"s_add_u32 s{S_RB}, s{S_RB}, s{S_NB}")
    e(f"s_lshr_b32 s{S_NB}, s{S_T3}, 2")
    e(f"s_and_b32 s{S_CW}, s{S_W}, 1"); e(f"s_lshr_b32 s{S_TW}, s{S_W}, 1")
    t0, t1, t2, t3 = VT+8, VT+9, VT+10, VT+11
    e(f"v_lshrrev_b32 v{V_H}, 5, v{L}"); e(f"v_and_b32 v{V_N}, 31, v{L}")
    e(f"v_bfe_u32 v{t0}, v{L}, 3, 2"); e(f"v_lshl_add_u32 v{t0}, v{V_H}, 4, v{t0}"); e(f"v_lshlrev_b32 v{t0}, 10, v{t0}")
    e(f"v_lshrrev_b32 v{t1}, 4, v{L}"); e(f"v_and_b32 v{t2}, 7, v{L}")
    e(f"v_xor_b32 v{t3}, v{t2}, v{t1}")
    for i in range(4):
        e(f"v_xor_b32 v{V_VX+i}, {4*(i&1)}, v{t3}")
        e(f"v_lshl_add_u32 v{V_VX+i}, v{V_VX+i}, 4, v{t0}")
        if i: e(f"v_add_u32 v{V_VX+i}, {i*3072}, v{V_VX+i}")
    e(f"s_lshl_b32 s{S_T2}, s{S_CW}, 2")
    e(f"v_xor_b32 v{V_VB}, s{S_T2}, v{t3}")
    e(f"v_lshrrev_b32 v{t0}, 3, v{L}"); e(f"v_lshlrev_b32 v{t0}, 10, v{t0}")
    e(f"v_lshl_add_u32 v{V_VB}, v{V_VB}, 4, v{t0}")
    e(f"v_lshrrev_b32 v{t0}, 2, v{L}"); e(f"v_mul_u32_u24 v{t0}, 3584, v{t0}")
    e(f"v_and_b32 v{t1}, 3, v{L}"); e(f"v_lshl_add_u32 v{V_WGA}, v{t1}, 4, v{t0}")
    e(f"v_xor_b32 v{t1}, 2, v{t1}"); e(f"v_lshl_add_u32 v{V_WUA}, v{t1}, 4, v{t0}")
    e(f"s_lshl_b32 s{S_XB}, s{S_R}, 17"); e(f"s_lshl_b32 s{S_T2}, s{S_W}, 15"); e(f"s_add_u32 s{S_XB}, s{S_XB}, s{S_T2}")
    e(f"s_lshl_b32 s{S_BB}, s{S_J}, 15"); e(f"s_lshl_b32 s{S_T2}, s{S_W}, 13"); e(f"s_add_u32 s{S_BB}, s{S_BB}, s{S_T2}")
    e(f"s_mul_i32 s{S_T2}, s{S_J}, 224"); e(f"s_and_b32 s{S_T1}, s{S_J}, 1"); e(f"s_lshl_b32 s{S_T3}, s{S_T1}, 5")
    e(f"s_add_u32 s{S_T3}, s{S_T2}, s{S_T3}")
    e(f"s_mul_i32 s{S_WA}, s{S_W}, {16*3584}"); e(f"s_add_u32 s{S_WA}, s{S_WA}, s{S_T3}")
    e(f"s_mul_i32 s{S_WBC}, s{S_W}, {64*3584}"); e(f"s_add_u32 s{S_WBC}, s{S_WBC}, s{S_T3}")
    e(f"s_cmp_eq_u32 s{S_T1}, 0"); e(f"s_cselect_b32 s{S_T3}, 192, 0"); e(f"s_add_u32 s{S_T3}, s{S_T3}, s{S_T2}")
    e(f"s_mul_i32 s{S_WDo}, s{S_W}, {128*3584}"); e(f"s_add_u32 s{S_WDo}, s{S_WDo}, s{S_T3}")
    e(f"s_lshl_b32 s{S_LX}, s{S_W}, 12"); e(f"s_add_u32 s{S_LB}, s{S_LX}, 16384")
    e("s_waitcnt lgkmcnt(0)")
    if diag:
        e(f"v_mov_b32 v{V_DIAG}, 0"); e(f"v_writelane_b32 v{V_DIAG}, s{S_STAMP}, 60"); e(f"v_writelane_b32 v{V_DIAG}, s{S_P2A}, 61")
    def mksrd(s, nbytes, down=0):
        if down:
            e(f"s_sub_u32 s{s}, s{s}, {down}"); e(f"s_subb_u32 s{s+1}, s{s+1}, 0")
        e(f"s_mov_b32 s{s+2}, {nbytes+down}"); e(f"s_mov_b32 s{s+3}, 0x20000")
    mksrd(S_X, 2048*512*2); mksrd(S_BRE, 512*512*2); mksrd(S_BIM, 512*512*2, 1024)
    mksrd(S_WG, 512*1792*2, 2048); mksrd(S_WU, 512*1792*2, 3072)
    chunk_tok = {}
    def dma_chunk(c):
        slot = (c % 4)*32768
        items = []
        it = items.append
        if c < 8:
            def x0():
                e(f"s_add_u32 m0, s{S_LX}, {slot}"); e(f"s_add_u32 s{S_DMA}, s{S_XB}, {c*128}")
                g.vm(f"buffer_load_dwordx4 v{V_VX}, {srd(S_X)}, s{S_DMA} offen{NT} lds")
            it(x0)
            for i in range(1,4):
                it(lambda i=i: g.vm(f"buffer_load_dwordx4 v{V_VX+i}, {srd(S_X)}, s{S_DMA} offen offset:{i*1024}{NT} lds"))
            def b0():
                e(f"s_add_u32 m0, s{S_LB}, {slot}"); e(f"s_add_u32 s{S_DMA}, s{S_BB}, {c*128}")
                g.vm(f"buffer_load_dwordx4 v{V_VB}, {srd(S_BRE)}, s{S_DMA} offen{NT} lds")
            it(b0)
            it(lambda: g.vm(f"buffer_load_dwordx4 v{V_VB}, {srd(S_BIM)}, s{S_DMA} offen offset:1024{NT} lds"))
            def w0():
                e(f"s_add_u32 s{S_DMA}, s{S_WA}, {c*64*3584}")
                g.vm(f"buffer_load_dwordx4 v{V_WGA}, {srd(S_WG)}, s{S_DMA} offen offset:2048{NT} lds")
            it(w0)
            def w1():
                chunk_tok[c] = g.vm(f"buffer_load_dwordx4 v{V_WUA}, {srd(S_WU)}, s{S_DMA} offen offset:3072{NT} lds")
            it(w1)
        else:
            if c < 12:
                q = 1 + (c-8)//2; hk = (c-8) % 2
                base, const = S_WBC, q*64 + hk*256*3584
            else:
                base, const = S_WDo, 0
            def g0():
                if c == 12:
                    tA, tB = VT+12, VT+13
                    e(f"v_lshrrev_b32 v{tA}, 1, v{L}"); e(f"v_and_b32 v{tB}, 1, v{L}"); e(f"v_lshlrev_b32 v{tB}, 4, v{tB}")
                    e(f"v_mul_u32_u24 v{V_WG}, 3584, v{tA}"); e(f"v_xor_b32 v{tA}, 4, v{tA}"); e(f"v_mul_u32_u24 v{V_WU}, 3584, v{tA}")
                    e(f"v_add_u32 v{V_WG}, v{V_WG}, v{tB}"); e(f"v_add_u32 v{V_WU}, v{V_WU}, v{tB}")
                    for i in range(1,4):
                        e(f"v_add_u32 v{V_WG+i}, {i*(32*3584-1024)}, v{V_WG}"); e(f"v_add_u32 v{V_WU+i}, {i*(32*3584-1024)}, v{V_WU}")
                e(f"s_add_u32 m0, s{S_LX}, {slot}"); e(f"s_add_u32 s{S_DMA}, s{base}, {const+2048}")
                g.vm(f"buffer_load_dwordx4 v{V_WG}, {srd(S_WG)}, s{S_DMA} offen{NT} lds")
            it(g0)
            for i in range(1,4):
                it(lambda i=i: g.vm(f"buffer_load_dwordx4 v{V_WG+i}, {srd(S_WG)}, s{S_DMA} offen offset:{i*1024}{NT} lds"))
            def u0():
                e(f"s_add_u32 m0, s{S_LB}, {slot}"); e(f"s_add_u32 s{S_DMA}, s{base}, {const+3072}")
                g.vm(f"buffer_load_dwordx4 v{V_WU}, {srd(S_WU)}, s{S_DMA} offen{NT} lds")
            it(u0)
            def ul(i):
                tok = g.vm(f"buffer_load_dwordx4 v{V_WU+i}, {srd(S_WU)}, s{S_DMA} offen offset:{i*1024}{NT} lds")
                if i == 3: chunk_tok[c] = tok
            for i in range(1,4): it(lambda i=i: ul(i))
        return items
    for f in dma_chunk(0): f()
    e(f"v_bfe_u32 v{t0}, v{V_N}, 1, 3"); e(f"v_xor_b32 v{t0}, v{t0}, v{V_H}"); e(f"v_lshlrev_b32 v{t0}, 4, v{t0}")
    e(f"v_lshl_add_u32 v{t0}, v{V_N}, 7, v{t0}")
    e(f"s_lshl_b32 s{S_T2}, s{S_W}, 12"); e(f"s_xor_b32 s{S_T3}, s{S_T2}, 4096")
    e(f"v_lshrrev_b32 v{t2}, 3, v{V_N}"); e(f"v_mul_u32_u24 v{t2}, 3072, v{t2}"); e(f"v_add_u32 v{t2}, 0x4000, v{t2}")
    for s_ in range(4):
        e(f"v_xor_b32 v{t1}, {32*s_}, v{t0}")
        e(f"v_add_u32 v{V_XA0+s_}, s{S_T2}, v{t1}"); e(f"v_add_u32 v{V_XA1+s_}, s{S_T3}, v{t1}")
        e(f"v_add_u32 v{V_BA+s_}, v{t1}, v{t2}")
    for f in dma_chunk(1): f()
    UP, LAM, TROW, TA2 = VT+28, VT+29, VT+30, VT+31
    e(f"v_bfe_u32 v{UP}, v{L}, 4, 1"); e(f"v_and_b32 v{LAM}, 15, v{L}")
    e(f"v_lshrrev_b32 v{TROW}, 2, v{LAM}"); e(f"v_lshl_add_u32 v{TROW}, v{V_H}, 3, v{TROW}")
    e(f"v_and_b32 v{t1}, 3, v{LAM}"); e(f"v_lshlrev_b32 v{t1}, 3, v{t1}")
    e(f"v_xor_b32 v{t2}, s{S_CW}, v{UP}"); e(f"v_lshl_add_u32 v{t1}, v{t2}, 5, v{t1}")
    e(f"v_lshl_add_u32 v{TA2}, v{TROW}, 6, v{t1}")
    e(f"v_lshlrev_b32 v{t3}, 10, v{UP}"); e(f"v_add_u32 v{V_WA}, v{TA2}, v{t3}"); e(f"v_add_u32 v{V_WA}, 0x4800, v{V_WA}")
    for f in dma_chunk(2): f()
    mksrd(S_WS, WS_RECORDS); mksrd(S_DBG, 256)
    e(f"s_mov_b32 s{S_SPIN}, 0")
    e(f"s_or_b32 s{S_T0}, s2, s{S_W}"); e(f"s_cmp_eq_u32 s{S_T0}, 0"); e(f"s_cbranch_scc0 {name}_nononce")
    e(f"s_memrealtime {sp(S_T0)}"); e("s_waitcnt lgkmcnt(0)"); e(f"s_or_b32 s{S_T0}, s{S_T0}, 1")
    e(f"v_mov_b32 v{t0}, 0"); e(f"v_mov_b32 v{t1}, s{S_T0}")
    e(f"buffer_store_dword v{t1}, v{t0}, {srd(S_DBG)}, 0 offen{SC}")
    g.label(f"{name}_nononce")
    PL, PI_, PD = 128, 129, 130
    e(f"s_lshl_b32 s{S_T2}, s{S_J}, 6"); e(f"v_lshl_add_u32 v{t0}, v{V_N}, 1, s{S_T2}")
    g.vm(f"global_load_ushort v{PL}, v{t0}, {sp(S_LRE)}")
    g.vm(f"global_load_ushort v{PI_}, v{t0}, {sp(S_LIM)}")
    tk_par = g.vm(f"global_load_ushort v{PD}, v{t0}, {sp(S_LDT)}")

    fillers = deque(); dmaq = deque()
    def F(txt): fillers.append(lambda t=txt: e(t))
    FF = fillers.append
    def fill_to(limit):
        while fillers and g.cost < limit: fillers.popleft()()
    def flush():
        while fillers: fillers.popleft()()

    def setup_stream():
        a0, a1, a2, a3 = VT+12, VT+13, VT+14, VT+15
        F(f"v_lshlrev_b32 v{V_L16B}, 4, v{L}")
        F(f"v_lshlrev_b32 v{a3}, 14, v{UP}"); F(f"v_add_u32 v{V_WB}, v{TA2}, v{a3}")
        F(f"v_and_b32 v{a1}, 3, v{LAM}"); F(f"v_lshlrev_b32 v{a1}, 3, v{a1}"); F(f"v_lshl_add_u32 v{a1}, v{TROW}, 5, v{a1}")
        F(f"v_lshl_add_u32 v{a1}, v{UP}, 14, v{a1}")
        F(f"v_lshl_add_u32 v{V_WD0}, v{UP}, 7, v{a1}")
        F(f"v_xor_b32 v{a2}, 1, v{UP}"); F(f"v_lshl_add_u32 v{V_WD1}, v{a2}, 7, v{a1}")
        for i in range(4):
            F(f"v_add_u32 v{V_WG+i}, {i*(57344-1024)}, v{V_WGA}"); F(f"v_add_u32 v{V_WU+i}, {i*(57344-1024)}, v{V_WUA}")
        F(f"s_mov_b32 s{S_OOB}, 0x7ffffff0")
        def blk1():
            e(f"s_lshl_b32 s{S_T2}, s{S_W}, 9"); e(f"s_add_u32 s{S_T2}, s{S_T2}, {LDS_E}")
            e(f"v_lshlrev_b32 v{a0}, 3, v{V_N}"); e(f"v_lshl_add_u32 v{V_EW}, v{V_H}, 8, v{a0}"); e(f"v_add_u32 v{V_EW}, s{S_T2}, v{V_EW}")
        FF(blk1); F(f"v_add_u32 v{V_ER}, {LDS_E}, v{a0}")
        def blk2():
            e(f"s_lshl_b32 s{S_T2}, s{S_W}, 12"); e(f"s_add_u32 s{S_T1}, s{S_T2}, {LDS_TB}")
            e(f"v_lshlrev_b32 v{a0}, 2, v{V_N}"); e(f"v_lshl_add_u32 v{V_TBW}, v{V_H}, 11, v{a0}"); e(f"v_add_u32 v{V_TBW}, s{S_T1}, v{V_TBW}")
        FF(blk2)
        F(f"v_bfe_u32 v{a0}, v{V_N}, 2, 1"); F(f"v_lshlrev_b32 v{a0}, 4, v{a0}")
        F(f"v_lshrrev_b32 v{a1}, 3, v{V_N}"); F(f"v_lshl_add_u32 v{a0}, v{a1}, 2, v{a0}")
        F(f"v_and_b32 v{a1}, 3, v{V_N}"); F(f"v_add_u32 v{a0}, v{a0}, v{a1}")
        F(f"v_bfe_u32 v{a1}, v{a0}, 1, 3"); F(f"v_xor_b32 v{a1}, v{a1}, v{V_H}"); F(f"v_lshlrev_b32 v{a1}, 4, v{a1}")
        F(f"v_lshl_add_u32 v{V_TBR}, v{a0}, 7, v{a1}")
        def blk3():
            e(f"s_lshl_b32 s{S_T2}, s{S_W}, 12"); e(f"s_add_u32 s{S_T2}, s{S_T2}, {LDS_TB}"); e(f"v_add_u32 v{V_TBR}, s{S_T2}, v{V_TBR}")
        FF(blk3)
        for t in [f"s_lshl_b32 s{S_HS}, s{S_R}, 1", f"s_add_u32 s{S_HS}, s{S_HS}, s{S_TW}", f"s_mul_i32 s{S_HS}, s{S_HS}, {NSTEP*2048}",
                  f"s_mul_i32 s{S_H0}, s{S_J}, {7*2048}", f"s_add_u32 s{S_H0}, s{S_H0}, s{S_HS}", f"s_add_u32 s{S_H0}, s{S_H0}, {64*2048+HF_OFF}",
                  f"s_lshl_b32 s{S_H1}, s{S_J}, 13", f"s_add_u32 s{S_HS}, s{S_HS}, s{S_H1}", f"s_lshl_b32 s{S_H1}, s{S_CW}, 10", f"s_add_u32 s{S_HS}, s{S_HS}, s{S_H1}"]:
            F(t)
        if HF_OFF: F(f"s_add_u32 s{S_HS}, s{S_HS}, {HF_OFF}")
        def blk4():
            e(f"s_and_b32 s{S_T3}, s{S_J}, 1"); e(f"s_cmp_eq_u32 s{S_T3}, 0"); e(f"s_cselect_b32 s{S_HD}, {6*2048}, 0")
            e(f"s_add_u32 s{S_HD}, s{S_HD}, s{S_H0}"); e(f"s_add_u32 s{S_HD}, s{S_HD}, s{S_H1}")
        FF(blk4)
        def blk5():
            e(f"s_and_b32 s{S_T3}, s{S_J}, 1"); e(f"s_add_u32 s{S_T3}, s{S_T3}, s{S_CW}"); e(f"s_lshl_b32 s{S_T3}, s{S_T3}, 11")
            e(f"s_add_u32 s{S_T3}, s{S_T3}, s{S_H0}")
            e(f"s_add_u32 s{S_H0}, s{S_T3}, s{S_H1}"); e(f"s_xor_b32 s{S_H1}, s{S_H1}, 1024"); e(f"s_add_u32 s{S_H1}, s{S_H1}, s{S_T3}")
        FF(blk5)
        def blk6():
            e(f"s_lshl_b32 s{S_T2}, s{S_R}, 4"); e(f"s_add_u32 s{S_T2}, s{S_T2}, s{S_J}"); e(f"s_lshl_b32 s{S_T2}, s{S_T2}, 9"); e(f"s_add_u32 s{S_T2}, s{S_T2}, {S_OFF}")
            e(f"v_lshlrev_b32 v{a0}, 3, v{L}"); e(f"v_add_u32 v{a0}, s{S_T2}, v{a0}")
            e(f"v_cmp_gt_u32 vcc, 64, v0"); e(f"v_mov_b32 v{a1}, s{S_OOB}"); e("s_nop 0"); e(f"v_cndmask_b32 v{V_SOFF}, v{a1}, v{a0}, vcc")
        FF(blk6)
        def blk7():
            e(f"s_lshl_b32 s{S_T2}, s{S_W}, 1"); e(f"v_add_u32 v{a0}, s{S_T2}, v{V_H}")
        FF(blk7)
        for k in range(1, 8): F(f"v_cmp_eq_u32 s[{S_SEGM+2*k}:{S_SEGM+2*k+1}], {k}, v{a0}")
        F(f"v_mov_b32 v{V_C1}, {hx(GC1)}")
    def cmul_sq(T, dr, di, sr_, si):
        F(f"v_mul_f32 v{T}, v{si}, v{si}"); F(f"v_mul_f32 v{T+1}, v{sr_}, v{si}")
        F(f"v_fma_f32 v{dr}, v{sr_}, v{sr_}, -v{T}"); F(f"v_add_f32 v{di}, v{T+1}, v{T+1}")
    def params_stream():
        T = 144
        FF(lambda: g.wvm(tk_par))
        F(f"v_lshlrev_b32 v{PL}, 16, v{PL}"); F(f"v_lshlrev_b32 v{PI_}, 16, v{PI_}"); F(f"v_lshlrev_b32 v{PD}, 16, v{PD}")
        F(f"v_mul_f32 v{T}, {hx(LOG2E)}, v{PD}")
        F(f"v_exp_f32 v{T}, v{T}"); F(f"v_mul_f32 v{T+5}, v{PL}, v{PL}")
        F(f"v_cvt_pk_bf16_f32 v{T}, v{T}, v{T}"); F(f"v_lshlrev_b32 v{T}, 16, v{T}")
        F(f"v_mul_f32 v{T+1}, v{T}, v{PL}"); F(f"v_mul_f32 v{T+2}, v{T}, v{PI_}")
        F(f"v_mul_f32 v{T+1}, {hx(LOG2E)}, v{T+1}"); F(f"v_mul_f32 v{T+2}, {hx(1/(2*math.pi))}, v{T+2}")
        F(f"v_exp_f32 v{T+1}, v{T+1}"); F(f"v_fract_f32 v{T+2}, v{T+2}")
        F(f"v_fma_f32 v{T+5}, v{PI_}, v{PI_}, v{T+5}")
        F(f"v_cos_f32 v{T+3}, v{T+2}"); F(f"v_sin_f32 v{T+4}, v{T+2}"); F(f"v_rcp_f32 v{T+5}, v{T+5}")
        F(f"v_mul_f32 v{V_LR}, v{T+1}, v{T+3}"); F(f"v_mul_f32 v{V_LI}, v{T+1}, v{T+4}")
        F(f"v_add_f32 v{T}, -1.0, v{V_LR}"); F(f"v_add_f32 v{T+5}, v{T+5}, v{T+5}")
        F(f"v_mul_f32 v{T+2}, v{T}, v{PL}"); F(f"v_fma_f32 v{T+2}, v{V_LI}, v{PI_}, v{T+2}")
        F(f"v_mul_f32 v{T+3}, v{V_LI}, v{PL}"); F(f"v_fma_f32 v{T+3}, -v{T}, v{PI_}, v{T+3}")
        F(f"v_mul_f32 v{V_CR}, v{T+2}, v{T+5}"); F(f"v_mul_f32 v{V_CI}, v{T+3}, v{T+5}")
        cmul_sq(T+6, V_L16R, V_L16I, V_LR, V_LI)
        for _ in range(3): cmul_sq(T+6, V_L16R, V_L16I, V_L16R, V_L16I)
        cmul_sq(T+6, V_L128R, V_L128I, V_L16R, V_L16I)
        F(f"v_mov_b32 v{V_AR}, 1.0"); F(f"v_mov_b32 v{V_AI}, 0")
        pr, pi = V_L16R, V_L16I
        for k in range(1, 8):
            m = f"s[{S_SEGM+2*k}:{S_SEGM+2*k+1}]"
            F(f"v_cndmask_b32 v{V_AR}, v{V_AR}, v{pr}, {m}"); F(f"v_cndmask_b32 v{V_AI}, v{V_AI}, v{pi}, {m}")
            if k < 7:
                nr, ni = (T+8, T+9) if pr != T+8 else (T+10, T+11)
                F(f"v_mul_f32 v{T+6}, v{pi}, v{V_L16I}"); F(f"v_mul_f32 v{ni}, v{pi}, v{V_L16R}")
                F(f"v_fma_f32 v{nr}, v{pr}, v{V_L16R}, -v{T+6}"); F(f"v_fma_f32 v{ni}, v{pr}, v{V_L16I}, v{ni}")
                pr, pi = nr, ni
        for _ in range(2): cmul_sq(T+6, V_L128R, V_L128I, V_L128R, V_L128I)
    GX0, GX1, GW = 132, 136, 140
    tok = {}
    def gate_loads():
        def f():
            a0 = VT+12
            e(f"s_lshl_b32 s{S_T2}, s{S_R}, 7"); e(f"s_lshl_b32 s{S_T3}, s{S_J}, 3"); e(f"s_add_u32 s{S_T2}, s{S_T2}, s{S_T3}")
            e(f"s_lshl_b32 s{S_T3}, s{S_W}, 1"); e(f"s_add_u32 s{S_T2}, s{S_T2}, s{S_T3}")
            e(f"s_lshl_b32 s{S_T3}, s{S_T2}, 2"); e(f"s_add_u32 s{S_T3}, s{S_T3}, {G_OFF}"); e(f"v_mov_b32 v{V_GOFF}, s{S_T3}")
            e(f"s_lshl_b32 s{S_T2}, s{S_T2}, 10"); e(f"v_add_u32 v{a0}, s{S_T2}, v{V_L16B}")
            g.vm(f"global_load_dwordx4 {v4(GX0)}, v{a0}, {sp(S_X)}")
            g.vm(f"global_load_dwordx4 {v4(GX1)}, v{a0}, {sp(S_X)} offset:1024")
            tok['gate'] = g.vm(f"global_load_dwordx4 {v4(GW)}, v{V_L16B}, {sp(S_GW)}")
        FF(f)
    def gate_stream():
        T = VT+16
        FF(lambda: g.wvm(tok['gate']))
        for d in range(4):
            F(f"v_lshlrev_b32 v{T+4+d}, 16, v{GW+d}"); F(f"v_and_b32 v{GW+d}, 0xffff0000, v{GW+d}")
        for row, GX in enumerate((GX0, GX1)):
            acc = T + 8 + row
            for d in range(4):
                F(f"v_lshlrev_b32 v{T}, 16, v{GX+d}"); F(f"v_and_b32 v{T+2}, 0xffff0000, v{GX+d}")
                F(f"v_mul_f32 v{T}, v{T}, v{T+4+d}"); F(f"v_mul_f32 v{T+2}, v{T+2}, v{GW+d}")
                F(f"v_cvt_pk_bf16_f32 v{T}, v{T}, v{T+2}")
                F(f"v_lshlrev_b32 v{T+1}, 16, v{T}"); F(f"v_and_b32 v{T+2}, 0xffff0000, v{T}")
                if d == 0: F(f"v_add_f32 v{acc}, v{T+1}, v{T+2}")
                else:
                    F(f"v_add_f32 v{acc}, v{acc}, v{T+1}"); F(f"v_add_f32 v{acc}, v{acc}, v{T+2}")
        a0, a1 = T+8, T+9
        for mod in ("row_shr:1 row_mask:0xf bank_mask:0xf", "row_shr:2 row_mask:0xf bank_mask:0xf", "row_shr:4 row_mask:0xf bank_mask:0xf", "row_shr:8 row_mask:0xf bank_mask:0xf",
                    "row_bcast:15 row_mask:0xa bank_mask:0xf", "row_bcast:31 row_mask:0xc bank_mask:0xf"):
            def dp(mod=mod):
                e("s_nop 1"); e(f"v_add_f32_dpp v{a0}, v{a0}, v{a0} {mod}"); e(f"v_add_f32_dpp v{a1}, v{a1}, v{a1} {mod}")
            FF(dp)
        F(f"v_cvt_pk_bf16_f32 v{T}, v{a0}, v{a1}")
        F(f"v_lshlrev_b32 v{a0}, 16, v{T}"); F(f"v_and_b32 v{a1}, 0xffff0000, v{T}")
        F(f"v_mul_f32 v{a0}, {hx(-LOG2E)}, v{a0}"); F(f"v_mul_f32 v{a1}, {hx(-LOG2E)}, v{a1}")
        F(f"v_exp_f32 v{a0}, v{a0}"); F(f"v_exp_f32 v{a1}, v{a1}"); F(f"v_mov_b32 v{T+4}, s{S_OOB}")
        F(f"v_add_f32 v{a0}, 1.0, v{a0}"); F(f"v_add_f32 v{a1}, 1.0, v{a1}")
        F(f"v_rcp_f32 v{a0}, v{a0}"); F(f"v_rcp_f32 v{a1}, v{a1}"); F(f"v_cmp_eq_u32 vcc, 63, v{L}")
        F(f"v_cvt_pk_bf16_f32 v{T}, v{a0}, v{a1}")
        F(f"v_lshlrev_b32 v{T+2}, 16, v{T}"); F(f"v_and_b32 v{T+3}, 0xffff0000, v{T}")
        F(f"v_cndmask_b32 v{T+4}, v{T+4}, v{V_GOFF}, vcc")
        def gst(): tok['gst'] = g.vm(f"buffer_store_dwordx2 v[{T+2}:{T+3}], v{T+4}, {srd(S_WS)}, 0 offen{SC}")
        FF(gst)
    SJA = V_SJ
    def side_loads():
        a0, a1 = VT+12, VT+13
        def f1():
            e(f"s_lshl_b32 s{S_T2}, s{S_R}, 15"); e(f"s_lshl_b32 s{S_T3}, s{S_J}, 6"); e(f"s_add_u32 s{S_T2}, s{S_T2}, s{S_T3}")
            e(f"s_lshl_b32 s{S_T3}, s{S_W}, 4"); e(f"s_add_u32 s{S_T2}, s{S_T2}, s{S_T3}")
            e(f"v_lshlrev_b32 v{a0}, 10, v{V_N}"); e(f"v_lshl_add_u32 v{a0}, v{V_H}, 3, v{a0}"); e(f"v_add_u32 v{a0}, s{S_T2}, v{a0}")
            g.vm(f"global_load_dwordx2 v[{SJA}:{SJA+1}], v{a0}, {sp(S_CRE)}{NT}")
            tok['c'] = g.vm(f"global_load_dwordx2 v[{SJA+2}:{SJA+3}], v{a0}, {sp(S_CIM)}{NT}")
        FF(f1)
        def f2():
            e(f"s_mov_b32 s{S_SRD2}, s{S_WD}"); e(f"s_mov_b32 s{S_SRD2+1}, s{S_WD+1}"); e(f"s_mov_b32 s{S_SRD2+2}, {1792*512*2}"); e(f"s_mov_b32 s{S_SRD2+3}, 0x20000")
            e(f"v_lshrrev_b32 v{a0}, 2, v{L}"); e(f"v_lshlrev_b32 v{a0}, 10, v{a0}"); e(f"v_and_b32 v{a1}, 3, v{L}"); e(f"v_lshl_add_u32 v{a0}, v{a1}, 4, v{a0}")
            e(f"s_mul_i32 s{S_T2}, s{S_J}, 7"); e(f"s_add_u32 s{S_T2}, s{S_T2}, s{S_W}"); e(f"s_lshl_b32 s{S_T2}, s{S_T2}, 14")
            e(f"s_lshl_b32 s{S_T3}, s{S_R}, 6"); e(f"s_add_u32 s{S_T2}, s{S_T2}, s{S_T3}")
            e(f"s_add_u32 m0, s{S_LX}, {LDS_TB}"); e("s_nop 0")
            g.vm(f"buffer_load_dwordx4 v{a0}, {srd(S_SRD2)}, s{S_T2} offen{NT} lds")
            e(f"s_add_u32 s{S_T3}, s{S_W}, 4"); e(f"s_min_u32 s{S_T3}, s{S_T3}, 6"); e(f"s_sub_u32 s{S_T3}, s{S_T3}, s{S_W}"); e(f"s_lshl_b32 s{S_T3}, s{S_T3}, 14")
            e(f"s_add_u32 s{S_T2}, s{S_T2}, s{S_T3}"); e(f"s_add_u32 m0, s{S_LX}, {LDS_TB+1024}"); e("s_nop 0")
            tok['wd'] = g.vm(f"buffer_load_dwordx4 v{a0}, {srd(S_SRD2)}, s{S_T2} offen{NT} lds")
        tok['side_dma'] = f2
    def side_stream():
        T = 156; SW = 148
        a0 = VT+12
        def f1():
            g.wvm(tok['wd'])
            e(f"v_lshrrev_b32 v{a0}, 2, v{LAM}"); e(f"v_lshl_add_u32 v{a0}, v{V_H}, 2, v{a0}"); e(f"v_lshlrev_b32 v{a0}, 6, v{a0}")
            e(f"v_lshl_add_u32 v{a0}, v{UP}, 5, v{a0}"); e(f"v_and_b32 v{a0+1}, 3, v{LAM}"); e(f"v_lshl_add_u32 v{a0}, v{a0+1}, 3, v{a0}")
            e(f"s_add_u32 s{S_T2}, s{S_LX}, {LDS_TB}"); e(f"v_add_u32 v{a0}, s{S_T2}, v{a0}")
            for fr in range(2):
                g.lg(f"ds_read_b64_tr_b16 v[{SW+4*fr}:{SW+4*fr+1}], v{a0} offset:{fr*1024}")
                tok['swr'] = g.lg(f"ds_read_b64_tr_b16 v[{SW+4*fr+2}:{SW+4*fr+3}], v{a0} offset:{fr*1024+512}")
        FF(f1)
        F(f"s_mov_b32 s{S_T0}, 0x05040100"); F(f"s_mov_b32 s{S_T1}, 0x07060302")
        F(f"v_perm_b32 v{T}, v{SJA+2}, v{SJA}, s{S_T0}"); F(f"v_perm_b32 v{T+1}, v{SJA+2}, v{SJA}, s{S_T1}")
        F(f"v_perm_b32 v{T+2}, v{SJA+3}, v{SJA+1}, s{S_T0}"); F(f"v_perm_b32 v{T+3}, v{SJA+3}, v{SJA+1}, s{S_T1}")
        def st():
            e(f"s_lshr_b32 s{S_T2}, s{S_R}, 1"); e(f"s_mul_i32 s{S_T2}, s{S_T2}, {NSTEP*2048}")
            e(f"s_and_b32 s{S_T3}, s{S_R}, 1"); e(f"s_lshl_b32 s{S_T3}, s{S_T3}, 10"); e(f"s_add_u32 s{S_T2}, s{S_T2}, s{S_T3}")
            e(f"s_add_u32 s{S_T2}, s{S_T2}, {WF_OFF}")
            e(f"s_lshl_b32 s{S_T3}, s{S_J}, 2"); e(f"s_add_u32 s{S_T3}, s{S_T3}, s{S_W}"); e(f"s_lshl_b32 s{S_T3}, s{S_T3}, 11"); e(f"s_add_u32 s{S_T3}, s{S_T3}, s{S_T2}")
            g.vm(f"buffer_store_dwordx4 {v4(T)}, v{V_L16B}, {srd(S_WS)}, s{S_T3} offen{SC}")
            e(f"s_mul_i32 s{S_T3}, s{S_J}, 7"); e(f"s_add_u32 s{S_T3}, s{S_T3}, 64"); e(f"s_add_u32 s{S_T3}, s{S_T3}, s{S_W}"); e(f"s_lshl_b32 s{S_T3}, s{S_T3}, 11"); e(f"s_add_u32 s{S_T3}, s{S_T3}, s{S_T2}")
            g.wlg(tok['swr'])
            g.vm(f"buffer_store_dwordx4 {v4(SW)}, v{V_L16B}, {srd(S_WS)}, s{S_T3} offen{SC}")
            e(f"s_add_u32 s{S_T2}, s{S_W}, 4"); e(f"s_min_u32 s{S_T2}, s{S_T2}, 6"); e(f"s_sub_u32 s{S_T2}, s{S_T2}, s{S_W}"); e(f"s_lshl_b32 s{S_T2}, s{S_T2}, 11"); e(f"s_add_u32 s{S_T3}, s{S_T3}, s{S_T2}")
            tok['side_done'] = g.vm(f"buffer_store_dwordx4 {v4(SW+4)}, v{V_L16B}, {srd(S_WS)}, s{S_T3} offen{SC}")
        FF(lambda: g.wvm(tok['c']))
        FF(st)
    outsel = [0]
    def ffn_epi(R, soff_reg, soff_const):
        O = V_OUT + 4*outsel[0]; outsel[0] ^= 1
        T = VT
        seq = []
        for pr in range(4):
            i0, i1 = 2*pr, 2*pr+1
            b = T + 8*(pr & 1)
            a_ = [f"v_mul_f32 v{b}, v{R+i0}, v{R+i0}", f"v_mul_f32 v{b+1}, v{R+i1}, v{R+i1}",
                  f"v_fmamk_f32 v{b}, v{b}, {hx(GC2)}, v{V_C1}", f"v_fmamk_f32 v{b+1}, v{b+1}, {hx(GC2)}, v{V_C1}",
                  f"v_mul_f32 v{b}, v{R+i0}, v{b}", f"v_mul_f32 v{b+1}, v{R+i1}, v{b+1}",
                  f"v_exp_f32 v{b}, v{b}", f"v_exp_f32 v{b+1}, v{b+1}",
                  f"v_mul_f32 v{b+2}, v{R+i0}, v{R+8+i0}", f"v_mul_f32 v{b+3}, v{R+i1}, v{R+8+i1}",
                  f"v_add_f32 v{b}, 1.0, v{b}", f"v_add_f32 v{b+1}, 1.0, v{b+1}",
                  f"v_rcp_f32 v{b}, v{b}", f"v_rcp_f32 v{b+1}, v{b+1}"]
            tail = [f"v_mul_f32 v{b+2}, v{b+2}, v{b}", f"v_mul_f32 v{b+3}, v{b+3}, v{b+1}", f"v_cvt_pk_bf16_f32 v{O+pr}, v{b+2}, v{b+3}"]
            seq.append((a_, tail))
        out = list(seq[0][0])
        for pr in range(1, 4): out += seq[pr][0][:2] + seq[pr-1][1] + seq[pr][0][2:]
        out += ["s_nop 0"] + seq[3][1]
        for t in out: F(t)
        def st():
            e(f"s_add_u32 s{S_T2}, s{soff_reg}, {soff_const}")
            tok['hlast'] = g.vm(f"buffer_store_dwordx4 {v4(O)}, v{V_L16B}, {srd(S_WS)}, s{S_T2} offen{SC}")
        FF(st)
    def crec(emit, sr_, si, nr, ni, lr, li, xr, xi):
        emit(f"v_fma_f32 v{nr}, v{lr}, v{sr_}, v{xr}"); emit(f"v_fma_f32 v{ni}, v{lr}, v{si}, v{xi}")
        emit(f"v_fma_f32 v{nr}, -v{li}, v{si}, v{nr}"); emit(f"v_fma_f32 v{ni}, v{li}, v{sr_}, v{ni}")
    def scan1():
        A, B = VT+16, VT+18
        cur = (SRE, SIM)
        for i in range(1, 16):
            nxt = (A, A+1) if (i & 1) else (B, B+1)
            crec(F, cur[0], cur[1], nxt[0], nxt[1], V_LR, V_LI, SRE+i, SIM+i); cur = nxt
        def ew():
            g.lg(f"ds_write_b64 v{V_EW}, v[{cur[0]}:{cur[1]}]"); tok['Ew'] = True
        FF(ew)
    EB = VT+20
    def combine():
        T = VT+36
        toks = []
        for k in range(8): FF(lambda k=k: toks.append(g.lg(f"ds_read_b64 v[{EB+2*k}:{EB+2*k+1}], v{V_ER} offset:{k*256}")))
        F(f"v_mov_b32 v{V_PR}, 0"); F(f"v_mov_b32 v{V_PI}, 0")
        FF(lambda: g.wlg(toks[7]))
        cur = (EB, EB+1)
        for k in range(1, 8):
            m = f"s[{S_SEGM+2*k}:{S_SEGM+2*k+1}]"
            F(f"v_cndmask_b32 v{V_PR}, v{V_PR}, v{cur[0]}, {m}"); F(f"v_cndmask_b32 v{V_PI}, v{V_PI}, v{cur[1]}, {m}")
            nxt = (T, T+1) if (k & 1) else (T+2, T+3)
            crec(F, cur[0], cur[1], nxt[0], nxt[1], V_L16R, V_L16I, EB+2*k, EB+2*k+1); cur = nxt
        def st():
            e(f"v_cmp_gt_u32 vcc, 32, v{L}"); e(f"v_mov_b32 v{T+5}, s{S_NONCE}"); e("s_nop 0")
            e(f"v_cndmask_b32 v{T+4}, v{cur[1]}, v{cur[0]}, vcc")
            tok['S'] = g.vm(f"buffer_store_dwordx2 v[{T+4}:{T+5}], v{V_SOFF}, {srd(S_WS)}, 0 offen{SC}")
        FF(st)
    def flag_store(kind):
        T = VT+42
        e(f"s_lshl_b32 s{S_T2}, s{S_J}, 4"); e(f"s_add_u32 s{S_T2}, s{S_T2}, s{S_R}"); e(f"s_lshl_b32 s{S_T2}, s{S_T2}, 7")
        e(f"s_add_u32 s{S_T2}, s{S_T2}, {FL_OFF + kind*32768}")
        e(f"v_cmp_eq_u32 vcc, 0, v0"); e(f"v_mov_b32 v{T}, s{S_OOB}"); e(f"v_mov_b32 v{T+1}, s{S_T2}")
        e(f"v_cndmask_b32 v{T}, v{T}, v{T+1}, vcc"); e(f"v_mov_b32 v{T+1}, s{S_NONCE}")
        g.vm(f"buffer_store_dword v{T+1}, v{T}, {srd(S_WS)}, 0 offen{SC}")
    polls = []
    def poll_check(tag, vaddr, vdst, need, first_tok, srdreg):
        g.wvm(first_tok)
        g.label(f"{name}_chk_{tag}")
        e(f"v_cmp_eq_u32 vcc, s{S_NONCE}, v{vdst}") if tag != "n" else e(f"v_cmp_ne_u32 vcc, 0, v{vdst}")
        e(f"s_and_b32 s{S_T0}, vcc_lo, {need}")
        e(f"s_cmp_eq_u32 s{S_T0}, {need}")
        e(f"s_cbranch_scc0 {name}_spin_{tag}")
        g.label(f"{name}_ok_{tag}")
        polls.append((tag, vaddr, vdst, srdreg))
    def nonce_load():
        def f():
            e(f"v_mov_b32 v{VT+42}, 0")
            tok['nonce'] = g.vm(f"buffer_load_dword v{VT+43}, v{VT+42}, {srd(S_DBG)}, 0 offen{SC}")
        FF(f)
    def nonce_check():
        def f():
            poll_check("n", VT+42, VT+43, "-1", tok['nonce'], S_DBG)
            e(f"v_readfirstlane_b32 s{S_NONCE}, v{VT+43}")
            e("s_nop 3")
        FF(f)
    SB = VT+16
    VP = VT+46; VPD = VT+4
    def lookback_setup():
        def f():
            e(f"s_sub_u32 s{S_T2}, s{S_R}, 15"); e(f"s_lshl_b32 s{S_T2}, s{S_T2}, 13"); e(f"s_lshl_b32 s{S_T3}, s{S_J}, 9"); e(f"s_add_u32 s{S_T2}, s{S_T2}, s{S_T3}")
            e(f"v_lshl_add_u32 v{VP}, v{L}, 3, s{S_T2}")
            e(f"s_mov_b32 s{S_SRD2}, s{S_WS}"); e(f"s_mov_b32 s{S_SRD2+1}, s{S_WS+1}")
            e(f"s_add_u32 s{S_SRD2}, s{S_SRD2}, {S_OFF}"); e(f"s_addc_u32 s{S_SRD2+1}, s{S_SRD2+1}, 0")
            e(f"s_mov_b32 s{S_SRD2+2}, 131072"); e(f"s_mov_b32 s{S_SRD2+3}, 0x20000")
            e(f"v_mov_b32 v{VT+12}, v{VP}")
        FF(f)
    def lookback_loads(emit_closure):
        for m in range(15):
            def ld(m=m):
                tok[('S', m)] = g.vm(f"buffer_load_dwordx2 v[{SB+2*m}:{SB+2*m+1}], v{VT+12}, {srd(S_SRD2)}, 0 offen{SC}")
                if m < 14: e(f"v_add_u32 v{VT+12}, 0x2000, v{VT+12}")
            emit_closure(ld)
    def lookback_check():
        g.wvm(tok[('S', 14)])
        g.label(f"{name}_chk_lb")
        e(f"s_mov_b64 s[{S_T0}:{S_T0+1}], -1")
        for m in range(15):
            e(f"s_cmp_ge_u32 s{S_R}, {15-m}"); e(f"s_cselect_b32 s{S_T2}, s{S_NONCE}, 0")
            e(f"v_cmp_eq_u32 vcc, s{S_T2}, v{SB+2*m+1}")
            e(f"s_and_b64 s[{S_T0}:{S_T0+1}], s[{S_T0}:{S_T0+1}], vcc")
        e(f"s_cmp_eq_u64 s[{S_T0}:{S_T0+1}], -1")
        e(f"s_cbranch_scc0 {name}_spin_lb")
        g.label(f"{name}_ok_lb")
    def wreg(s):
        k = s % 32
        return 128 + 8*k if k < 16 else 8*(k-16)
    def p2_step_index(s):
        return (False, s) if s < 16 else (True, s-16)
    def wload(s):
        ffn, k = p2_step_index(s)
        base = S_WP2 if ffn else S_WP
        def f():
            e(f"s_add_u32 s{S_T2}, s{base}, {k*2048}")
            r = wreg(s)
            g.vm(f"buffer_load_dwordx4 a[{r}:{r+3}], v{V_L16B}, {srd(S_WS)}, s{S_T2} offen{SC}")
            tok[('W', s)] = g.vm(f"buffer_load_dwordx4 a[{r+4}:{r+7}], v{V_L16B}, {srd(S_WS)}, s{S_T2} offen offset:1024{SC}")
        return f
    def wflag_poll_issue():
        def f():
            e(f"v_and_b32 v{VT+44}, 15, v{L}"); e(f"v_lshlrev_b32 v{VT+44}, 4, v{VT+44}"); e(f"v_bfe_u32 v{VT+45}, v{L}, 4, 1")
            e(f"v_add_u32 v{VT+44}, v{VT+44}, v{VT+45}"); e(f"s_lshl_b32 s{S_T2}, s{S_NB}, 1"); e(f"v_add_u32 v{VT+44}, s{S_T2}, v{VT+44}")
            e(f"v_lshlrev_b32 v{VT+44}, 7, v{VT+44}"); e(f"v_add_u32 v{VT+44}, {FL_OFF}, v{VT+44}")
            tok['wpoll'] = g.vm(f"buffer_load_dword v{VT+5}, v{VT+44}, {srd(S_WS)}, 0 offen{SC}")
            e(f"s_mul_i32 s{S_WP}, s{S_NB}, {NSTEP*2048}"); e(f"s_add_u32 s{S_WP}, s{S_WP}, {WF_OFF}")
            e(f"s_mul_i32 s{S_HP}, s{S_RB}, {NSTEP*2048}")
            if HF_OFF: e(f"s_add_u32 s{S_HP}, s{S_HP}, {HF_OFF}")
            e(f"s_mul_i32 s{S_T2}, s{S_W}, {28*2048}"); e(f"s_add_u32 s{S_T2}, s{S_T2}, {64*2048}")
            e(f"s_add_u32 s{S_WP2}, s{S_WP}, s{S_T2}"); e(f"s_add_u32 s{S_HP2}, s{S_HP}, s{S_T2}")
            e(f"s_lshl_b32 s{S_T2}, s{S_W}, 15"); e(f"s_add_u32 s{S_WP}, s{S_WP}, s{S_T2}"); e(f"s_add_u32 s{S_HP}, s{S_HP}, s{S_T2}")
        FF(f)
    def wflag_check():
        FF(lambda: poll_check("wf", VT+44, VT+5, "-1", tok['wpoll'], S_WS))

    steps = []
    for s in range(32):
        c, sp_ = s >> 2, s & 3
        lo = (c & 1)*32768; pb = s % 3
        reads = [("X0", f"ds_read_b128 {xreg(0,s)}, v{V_XA0+sp_} offset:{lo}"),
                 ("BR", f"ds_read_b128 {v4(FBR+4*pb)}, v{V_BA+sp_} offset:{lo}"),
                 ("BI", f"ds_read_b128 {v4(FBI+4*pb)}, v{V_BA+sp_} offset:{lo+1024}"),
                 ("W0", f"ds_read_b64_tr_b16 v[{FW+4*pb}:{FW+4*pb+1}], v{V_WA} offset:{lo+sp_*4096}"),
                 ("W1", f"ds_read_b64_tr_b16 v[{FW+4*pb+2}:{FW+4*pb+3}], v{V_WA} offset:{lo+sp_*4096+256}"),
                 ("X1", f"ds_read_b128 {xreg(1,s)}, v{V_XA1+sp_} offset:{lo}")]
        mf = [(SRE, xreg(0,s), v4(FBR+4*pb)), (SIM, xreg(0,s), v4(FBI+4*pb)), (P0, v4(FW+4*pb), xreg(0,s)), (P1, v4(FW+4*pb), xreg(1,s))]
        steps.append(dict(chunk=c, reads=reads, mf=mf, look=2, ph="A", s=s))
    for q, (a0_, a1_) in enumerate(((Q0, Q1), (P0, P1))):
        for s in range(32):
            c = 8 + 2*q + (s >> 4); sp_ = s & 15
            lo = (c & 1)*32768; pb = (s + 2) & 3
            reads = [("W0", f"ds_read_b64_tr_b16 v[{FW+4*pb}:{FW+4*pb+1}], v{V_WB} offset:{lo+sp_*1024}"),
                     ("W1", f"ds_read_b64_tr_b16 v[{FW+4*pb+2}:{FW+4*pb+3}], v{V_WB} offset:{lo+sp_*1024+256}")]
            mf = [(a0_, v4(FW+4*pb), xreg(0,s)), (a1_, v4(FW+4*pb), xreg(1,s))]
            steps.append(dict(chunk=c, reads=reads, mf=mf, look=3, ph="BC"[q], s=s))
    for s in range(32):
        pb = (s + 2) & 3
        reads = [("W0", f"ds_read_b64_tr_b16 v[{FW+4*pb}:{FW+4*pb+1}], v{V_WD0} offset:{s*512}"),
                 ("W1", f"ds_read_b64_tr_b16 v[{FW+4*pb+2}:{FW+4*pb+3}], v{V_WD1} offset:{s*512}")]
        mf = [(Q0, v4(FW+4*pb), xreg(0,s))]
        steps.append(dict(chunk=12, reads=reads, mf=mf, look=3, ph="D", s=s))
    addr_hi = {"A": [V_XA0+i for i in range(4)] + [V_XA1+i for i in range(4)] + [V_BA+i for i in range(4)] + [V_WA], "BC": [V_WB], "D": [V_WD0, V_WD1]}
    cur_hi = {r_: 0 for grp in addr_hi.values() for r_ in grp}
    tokens = {}; entered = set()
    state = dict(gap=0, last_read_gap=-10)
    def enter_chunk(c):
        entered.add(c)
        if c == 9:
            while 'Ew' not in tok: fillers.popleft()()
        while c not in chunk_tok: dmaq.popleft()()
        g.wlg(g.lgn)
        g.wvm(chunk_tok[c])
        if c == 9: g.wvm(max(tok['side_done'], tok['gst']))
        e("s_barrier")
        stamp()
        if c == 9 and fused: flag_store(0)
        if c + 3 <= 12:
            for f in dma_chunk(c+3): dmaq.append(f)
        if c == 2: dmaq.append(tok['side_dma'])
        hi = (c % 4) >> 1
        grp = addr_hi["A"] if c < 8 else (addr_hi["BC"] if c < 12 else addr_hi["D"])
        for r_ in grp:
            if cur_hi[r_] != hi:
                e(f"v_xor_b32 v{r_}, 0x10000, v{r_}"); cur_hi[r_] = hi
    pend = deque(); issued = [0]
    def queue_reads(upto):
        while issued[0] <= upto and issued[0] < len(steps):
            for nm, t in steps[issued[0]]["reads"]: pend.append((issued[0], nm, t))
            issued[0] += 1
    def issue_reads(n, cur_step, force=False):
        k = 0
        while pend and k < n:
            si, nm, t = pend[0]
            c = steps[si]["chunk"]
            if c not in entered:
                if not force and state['gap'] - state['last_read_gap'] < 2 and si > cur_step + 1: break
                enter_chunk(c)
            pend.popleft(); tokens[(si, nm)] = g.lg(t); k += 1; state['last_read_gap'] = state['gap']
        return k
    setup_stream(); params_stream(); gate_loads(); side_loads()
    queue_reads(1);
    while pend and pend[0][0] == 0: issue_reads(1, 0, True)
    nsteps = len(steps)
    for si, st in enumerate(steps):
        ph, s = st["ph"], st["s"]
        if ph == "A" and s == 10: nonce_load()
        if ph == "A" and s == 14: gate_stream(); side_stream()
        if ph == "A" and s == 28: nonce_check()
        if ph == "B" and s == 0: flush()
        if ph == "B" and s == 2: scan1(); ffn_epi(P0, S_H0, 0)
        if ph == "B" and s == 15: ffn_epi(P1, S_H1, 0); combine()
        if ph == "C" and s == 0: flush()
        if ph == "C" and s == 2: ffn_epi(Q0, S_H0, 4096); ffn_epi(Q1, S_H1, 4096)
        if ph == "C" and s == 24 and fused: wflag_poll_issue()
        if ph == "D" and s == 0:
            flush()
            if fused: wflag_check(); flush()
        if ph == "D" and s == 4: lookback_setup(); lookback_loads(FF); ffn_epi(P0, S_H0, 8192)
        queue_reads(si + st["look"])
        nm_ = len(st["mf"])
        while (si, st["reads"][-1][0]) not in tokens: issue_reads(1, si, True)
        g.wlg(tokens[(si, st["reads"][-1][0])])
        for mi, (D, A, B) in enumerate(st["mf"]):
            e(f"v_mfma_f32_32x32x16_bf16 {v16(D)}, {A}, {B}, {'0' if s == 0 else v16(D)}")
            c0 = g.cost
            state['gap'] += 1
            left = nm_ - mi
            nr = min((len(pend) + left - 1)//left, 3 if ph == "A" else 2)
            issue_reads(nr, si)
            due = (ph == "A" and mi in (0, 2)) or (ph in "BC" and mi == 0 and s % 2 == 0)
            if due and dmaq: dmaq.popleft()()
            if fused and ph == "D" and s >= 2 and s < 18 and mi == 0:
                wload(s-2)()
            last = (mi == nm_-1)
            fill_to(c0 + 6 - (1 if last else 0))
    assert not dmaq
    stamp_c = g.cost
    flush()
    g.wlg(g.lgn); stamp()
    T = VT+8
    lookback_check()
    for m in range(15): e(f"v_mov_b32 v{SB+2*m+1}, v{SB+2*m}")
    e("s_nop 0")
    for m in range(15): e(f"v_permlane32_swap_b32 v{SB+2*m}, v{SB+2*m+1}")
    cur = (SB, SB+1)
    for m in range(1, 15):
        nxt = (T, T+1) if (m & 1) else (T+2, T+3)
        crec(e, cur[0], cur[1], nxt[0], nxt[1], V_L128R, V_L128I, SB+2*m, SB+2*m+1); cur = nxt
    hA, hB = (T+4, T+5), (T+6, T+7)
    crec(e, cur[0], cur[1], hA[0], hA[1], V_AR, V_AI, V_PR, V_PI)
    cur = hA; wt = []
    O1, O2, PK, AD = VT+16, VT+17, VT+18, VT+19
    for i in range(16):
        nxt = hB if cur == hA else hA
        crec(e, cur[0], cur[1], nxt[0], nxt[1], V_LR, V_LI, SRE+i, SIM+i); cur = nxt
        e(f"v_mul_f32 v{O1}, v{V_CR}, v{cur[0]}"); e(f"v_mul_f32 v{O2}, v{V_CR}, v{cur[1]}")
        e(f"v_fma_f32 v{O1}, -v{V_CI}, v{cur[1]}, v{O1}"); e(f"v_fma_f32 v{O2}, -v{V_CI}, v{cur[0]}, -v{O2}")
        if i % 2 == 0: e(f"v_xor_b32 v{AD}, {(i>>1)*16}, v{V_TBW}")
        e(f"v_cvt_pk_bf16_f32 v{PK}, v{O1}, v{O2}")
        wt.append(g.lg(f"ds_write_b32 v{AD}, v{PK} offset:{i*128}"))
    ffn_epi(P1, S_H1, 8192)
    flush()
    rt = []
    g.wlg(wt[-1])
    RB_ = VT+20
    for sg in range(4):
        e(f"v_xor_b32 v{AD}, {sg*32}, v{V_TBR}")
        rt.append(g.lg(f"ds_read_b128 {v4(RB_+4*sg)}, v{AD}"))
    ffn_epi(Q0, S_HD, 0)
    flush()
    for sg in range(4):
        g.wlg(rt[sg]); e(f"s_add_u32 s{S_T2}, s{S_HS}, {sg*2048}")
        tok['hlast'] = g.vm(f"buffer_store_dwordx4 {v4(RB_+4*sg)}, v{V_L16B}, {srd(S_WS)}, s{S_T2} offen{SC}")
    stamp()
    if fused:
        for s in range(16, 32): wload(s)()
        g.wvm(tok['hlast'])
        e("s_barrier")
        flag_store(1)
        stamp()
        e(f"s_lshr_b32 s{S_T2}, s{S_RB}, 1"); e(f"v_lshl_add_u32 v8, v{L}, 4, s{S_T2}")
        e(f"v_lshlrev_b32 v8, 7, v8"); e(f"v_add_u32 v8, {FL_OFF+32768}, v8")
        e(f"v_cmp_gt_u32 vcc, 16, v{L}"); e(f"v_mov_b32 v9, s{S_OOB}"); e("s_nop 0"); e(f"v_cndmask_b32 v8, v9, v8, vcc")
        tk = g.vm(f"buffer_load_dword v9, v8, {srd(S_WS)}, 0 offen{SC}")
        e(f"s_mov_b32 s{S_OUT+2}, {2048*512*4}"); e(f"s_mov_b32 s{S_OUT+3}, 0x20000")
        e(f"s_and_b32 s{S_P2A}, s{S_W}, 1"); e(f"s_lshr_b32 s{S_P2B}, s{S_W}, 1")
        e(f"s_lshl_b32 s{S_T2}, s{S_RB}, 1"); e(f"s_add_u32 s{S_T2}, s{S_T2}, s{S_P2B}"); e(f"s_lshl_b32 s{S_T2}, s{S_T2}, 14")
        e(f"s_lshl_b32 s{S_T3}, s{S_NB}, 1"); e(f"s_add_u32 s{S_T3}, s{S_T3}, s{S_P2A}"); e(f"s_lshl_b32 s{S_T3}, s{S_T3}, 5")
        e(f"s_add_u32 s{S_T2}, s{S_T2}, s{S_T3}")
        e(f"v_lshlrev_b32 v2, 13, v{V_H}"); e(f"v_add_u32 v2, v2, v{V_N}")
        e(f"v_lshlrev_b32 v3, 1, v2"); e(f"v_lshlrev_b32 v4, 2, v2")
        e(f"s_cmp_ge_u32 s{S_W}, 2"); e(f"s_cselect_b64 s[{S_SEGM}:{S_SEGM+1}], -1, 0")
        e(f"s_lshl_b32 s{S_P2A}, s{S_T2}, 1"); e(f"s_lshl_b32 s{S_P2B}, s{S_T2}, 2")
        e(f"v_add_u32 v5, s{S_T3}, v{V_N}"); e(f"v_lshlrev_b32 v5, 1, v5")
        e(f"v_mov_b32 v{DV}, 0")
        for i in range(16): e(f"v_mov_b32 v{XV+i}, 0")
        g.vm(f"global_load_short_d16_hi v{DV}, v5, {sp(S_DSK)}")
        for i in range(16):
            if i % 4 == 0 and i: e(f"s_add_u32 s{S_P2A}, s{S_P2A}, 4096")
            tok['xv'] = g.vm(f"buffer_load_short_d16_hi v{XV+i}, v3, {srd(S_X)}, s{S_P2A} offen offset:{(i%4)*1024}")
        poll_check("h", 8, 9, "0xffff", tk, S_WS)
        stamp()
        def hload(s):
            ffn, k = p2_step_index(s)
            base = S_HP2 if ffn else S_HP
            e(f"s_add_u32 s{S_T2}, s{base}, {k*2048}")
            r = HR + 8*(s % 8)
            g.vm(f"buffer_load_dwordx4 {v4(r)}, v{V_L16B}, {srd(S_WS)}, s{S_T2} offen{SC}")
            tok[('H', s)] = g.vm(f"buffer_load_dwordx4 {v4(r+4)}, v{V_L16B}, {srd(S_WS)}, s{S_T2} offen offset:1024{SC}")
        for s in range(8): hload(s)
        e(f"v_lshlrev_b32 v6, 6, v{V_H}"); e(f"s_lshl_b32 s{S_T3}, s{S_RB}, 8"); e(f"s_add_u32 s{S_T3}, s{S_T3}, {G_OFF}")
        for tt in range(2):
            for q in range(4):
                tok['G'] = g.vm(f"buffer_load_dwordx4 {v4(GV+16*tt+4*q)}, v6, {srd(S_WS)}, s{S_T3} offen offset:{tt*128+q*16}{SC}")
        def p2_fillers():
            FF(lambda: g.wvm(tok['G']))
            for t4 in range(4):
                for i in range(16): F(f"v_mul_f32 v{ACCS+16*t4+i}, v{GV+16*(t4>>1)+i}, v{ACCS+16*t4+i}")
            for i in range(16): F(f"v_mul_f32 v{XV+i}, v{XV+i}, v{DV}")
            for i in range(16):
                F(f"v_cndmask_b32 v11, v{GV+i}, v{GV+16+i}, s[{S_SEGM}:{S_SEGM+1}]"); F(f"v_mul_f32 v{XV+i}, v{XV+i}, v11")
            for k in range(32): F(f"v_sub_f32 v{GV+k}, 1.0, v{GV+k}")
        for s in range(44):
            if s == 19: p2_fillers()
            g.wvm(max(tok[('H', s)], tok[('W', s)]))
            acc = ACCS if s < 16 else ACCF
            first = s in (0, 16)
            r = HR + 8*(s % 8); w_ = wreg(s)
            for tt in range(2):
                for dt in range(2):
                    D = acc + 16*(2*tt+dt)
                    e(f"v_mfma_f32_32x32x16_bf16 {v16(D)}, {v4(r+4*tt)}, a[{w_+4*dt}:{w_+4*dt+3}], {'0' if first else v16(D)}")
                    c0 = g.cost
                    if tt == 1 and dt == 1:
                        if s + 8 < 44: hload(s+8)
                        if s + 32 < 44: wload(s+32)()
                    fill_to(c0 + 5)
        flush()
        e("s_nop 7"); e("s_nop 7")
        stamp()
        for t4 in range(4):
            for i in range(16):
                e(f"v_fma_f32 v{ACCF+16*t4+i}, v{GV+16*(t4>>1)+i}, v{ACCF+16*t4+i}, v{ACCS+16*t4+i}")
        e(f"v_lshlrev_b32 v7, 4, v{L}")
        for wv in (1, 2, 3):
            e(f"s_cmp_eq_u32 s{S_W}, {wv}"); e(f"s_cbranch_scc1 {name}_red{wv}")
        def red(w):
            for q in range(4):
                if q == w: continue
                slot = (w - q - 1) & 3
                for jj in range(4):
                    r = ACCF + 16*q + 4*jj
                    e(f"ds_write_b128 v7, {v4(r)} offset:{(q*3+slot)*4096 + jj*1024}")
            e("s_waitcnt lgkmcnt(0)"); e("s_barrier")
            for slot in range(3):
                for jj in range(4):
                    e(f"ds_read_b128 {v4(ACCS+16*slot+4*jj)}, v7 offset:{(w*3+slot)*4096 + jj*1024}")
            for i in range(16): e(f"v_add_f32 v{ACCF+16*w+i}, v{ACCF+16*w+i}, v{XV+i}")
            for slot in range(3):
                e(f"s_waitcnt lgkmcnt({8-4*slot})")
                for i in range(16): e(f"v_add_f32 v{ACCF+16*w+i}, v{ACCF+16*w+i}, v{ACCS+16*slot+i}")
            for i in range(16):
                if i % 2 == 0 and i: e(f"s_add_u32 s{S_P2B}, s{S_P2B}, 4096")
                e(f"buffer_store_dword v{ACCF+16*w+i}, v4, {srd(S_OUT)}, s{S_P2B} offen offset:{(i%2)*2048}")
            e(f"s_branch {name}_fin")
        red(0)
        for wv in (1, 2, 3):
            g.label(f"{name}_red{wv}"); red(wv)
        g.label(f"{name}_fin")
    if diag:
        e("s_waitcnt vmcnt(0)"); g.lgd = g.lgn
        stamp()
        e(f"s_memrealtime {sp(S_T0)}"); e("s_waitcnt lgkmcnt(0)")
        e(f"v_writelane_b32 v{V_DIAG}, s{S_T0}, 62")
        e(f"s_cmp_eq_u32 s{S_W}, 0"); e(f"s_cbranch_scc0 {name}_end")
        e(f"v_lshlrev_b32 v28, 2, v{L}"); e(f"s_lshl_b32 s{S_T2}, s2, 8"); e(f"s_add_u32 s{S_T2}, s{S_T2}, {DIAG_OFF}")
        e(f"buffer_store_dword v{V_DIAG}, v28, {srd(S_WS)}, s{S_T2} offen")
        e("s_waitcnt vmcnt(0)")
    g.label(f"{name}_end")
    e("s_endpgm")
    for tag, vaddr, vdst, srdreg in polls:
        g.label(f"{name}_spin_{tag}")
        e(f"s_add_u32 s{S_SPIN}, s{S_SPIN}, 1"); e(f"s_cmp_gt_u32 s{S_SPIN}, 40000"); e(f"s_cbranch_scc1 {name}_ok_{tag}")
        e("s_sleep 4")
        e(f"buffer_load_dword v{vdst}, v{vaddr}, {srd(srdreg)}, 0 offen{SC}")
        e("s_waitcnt vmcnt(0)")
        e(f"s_branch {name}_chk_{tag}")
    g.label(f"{name}_spin_lb")
    e(f"s_add_u32 s{S_SPIN}, s{S_SPIN}, 1"); e(f"s_cmp_gt_u32 s{S_SPIN}, 40000"); e(f"s_cbranch_scc1 {name}_ok_lb")
    e("s_sleep 4")
    e(f"v_mov_b32 v{VT+12}, v{VP}")
    lookback_loads(lambda f: f())
    e("s_waitcnt vmcnt(0)")
    e(f"s_branch {name}_chk_lb")
    g.label(f"{name}_codeend")
    g(kernel_desc(name, 512, 102, 256))
    return g.text()

HEADER = None
def header():
    hdr = open("gated_mix__ssm_conv_s5__glu_gated_geglu__prompt.s.ref").read().split("\n")
    cm = [l for l in hdr if l.startswith(";") and "@launch" not in l and "Override launch" not in l and "grid=ceil" not in l]
    return "\n".join(cm) + "\n"

if __name__ == "__main__":
    name = "gated_mix__ssm_conv_s5__glu_gated_geglu__prompt_kernel"
    out = sys.argv[1] if len(sys.argv) > 1 else "fused.s"
    diag = "diag" in sys.argv
    nt = "nont" not in sys.argv
    txt = header() + f"; @launch grid=(256,1,1) block=(256,1,1) lds={LDS_TOTAL}\n.amdgcn_target \"amdgcn-amd-amdhsa--gfx950\"\n" + gen(name, diag, True, nt)
    open(out, "w").write(txt)
    print(out, len(txt.splitlines()), "lines")
```
